```python
import torch

def _softmax(x, axis=-1):
    return torch.softmax(x, dim=axis)
def _gelu(x):
    return torch.nn.functional.gelu(x, approximate="tanh")
def _silu(x):
    return torch.nn.functional.silu(x)
def _sigmoid(x):
    return torch.sigmoid(x)
def _layernorm(x, axis=-1, eps=1e-5):
    m = x.mean(dim=axis, keepdim=True)
    v = x.var(dim=axis, keepdim=True, unbiased=False)
    return (x - m) / torch.sqrt(v + eps)
def _scatter_add(tgt, idx, src, axis=0):
    return tgt.clone().index_add_(axis, idx, src)
def _segment_sum(src, seg, n):
    out = torch.zeros((n,) + src.shape[1:], dtype=src.dtype)
    return out.index_add_(0, seg, src)
def _pad(x, pw):
    flat = tuple(v for pair in reversed(pw) for v in pair)
    return torch.nn.functional.pad(x, flat)

kernel_name = 'parallel_sum__sliding_local_dilated__glu_gated_reglu__prompt'

def setup_inputs():

    _w = (lambda a: (lambda t: t.to(torch.bfloat16) if t.is_floating_point() else t)(torch.as_tensor(a)))
    def _A_setup():
        B, S, D = 1, 2048, 512
        return {
            "x": _w((lambda *s: torch.randn(*s, dtype=torch.bfloat16) * 0.05)(B, S, D)),
            "wqkv": _w((lambda *s: torch.randn(*s, dtype=torch.bfloat16) * 0.05)(D, 3 * D)),
            "wo": _w((lambda *s: torch.randn(*s, dtype=torch.bfloat16) * 0.05)(D, D)),
        }
    _A_in = _A_setup()

    def _B_setup():
        B, S, D, F = 1, 2048, 512, 1792
        return {
            "x": _w((lambda *s: torch.randn(*s, dtype=torch.bfloat16) * 0.05)(B, S, D)),
            "W_gate": _w((lambda *s: torch.randn(*s, dtype=torch.bfloat16) * 0.8)(D, F) * (2.0 / D) ** 0.5),
            "W_up": _w((lambda *s: torch.randn(*s, dtype=torch.bfloat16) * 0.8)(D, F) * (2.0 / D) ** 0.5),
            "W_down": _w((lambda *s: torch.randn(*s, dtype=torch.bfloat16) * 0.8)(F, D) * (1.0 / F) ** 0.5),
        }
    _B_in = _B_setup()

    return {
        "A_x": _A_in["x"],
        "A_wqkv": _A_in["wqkv"],
        "A_wo": _A_in["wo"],
        "B_x": _B_in["x"],
        "B_W_gate": _B_in["W_gate"],
        "B_W_up": _B_in["W_up"],
        "B_W_down": _B_in["W_down"],
    }

def reference(A_x, A_wqkv, A_wo, B_x, B_W_gate, B_W_up, B_W_down):
    def _A_ref(x, wqkv, wo):
        B, S, D = x.shape
        H = 32; Dh = D // H
        W, dil = 8, 2
        qkv = (lambda x, *d: x.permute(*d))((x @ wqkv).reshape(B, S, 3, H, Dh), 2, 0, 3, 1, 4)
        q, k, v = qkv[0], qkv[1], qkv[2]
        scale = Dh ** -0.5
        pos = torch.arange(S)
        off = torch.arange(W) * dil
        idx = pos[:, None] - off[None, :]
        mask = idx >= 0
        idx_c = torch.where(mask, idx, 0).reshape(-1)
        kg = k[:, :, idx_c, :].reshape(B, H, S, W, Dh)
        vg = v[:, :, idx_c, :].reshape(B, H, S, W, Dh)
        logits = torch.einsum("bhsd,bhswd->bhsw", q, kg) * scale
        logits = torch.where(mask[None, None, :, :], logits, -1e9)
        attn = _softmax(logits, axis=-1)
        o = torch.einsum("bhsw,bhswd->bhsd", attn, vg)
        return (lambda x, *d: x.permute(*d))(o, 0, 2, 1, 3).reshape(B, S, D) @ wo

    def _B_ref(x, W_gate, W_up, W_down):
        gate = torch.einsum("bsd,df->bsf", x, W_gate)
        up = torch.einsum("bsd,df->bsf", x, W_up)
        gate = gate * (lambda x, dt: x.to(dt))(gate > 0, gate.dtype)
        h = gate * up
        return torch.einsum("bsf,fd->bsd", h, W_down)

    x = A_x
    xn = _layernorm(x, axis=-1)
    return x + _A_ref(xn, A_wqkv, A_wo) + _B_ref(xn, B_W_gate, B_W_up, B_W_down)
```

```python
import re, sys
def regs(tok):
    tok = tok.strip()
    m = re.fullmatch(r"-?\|?([vsa])(\d+)\|?", tok)
    if m: return [(m.group(1), int(m.group(2)))]
    m = re.fullmatch(r"-?([vsa])\[(\d+):(\d+)\]", tok)
    if m: return [(m.group(1), i) for i in range(int(m.group(2)), int(m.group(3))+1)]
    if tok == "vcc": return [("s", "vcc")]
    if tok in ("exec", "exec_lo", "exec_hi"): return [("s", "exec")]
    if tok == "m0": return [("s", "m0")]
    return []
TRANS = ("v_exp_f32", "v_rcp_f32", "v_rsq_f32", "v_log_f32", "v_sqrt_f32")
def parse(line):
    line = line.split(";")[0].strip()
    if not line or line.endswith(":") or line.startswith("."): return None
    parts = line.split(None, 1)
    op = parts[0]
    ops = []
    if len(parts) > 1:
        body = re.split(r"\s+(?=offen|offset|op_sel|neg_|sc0|sc1|nt\b|lds\b|glc|off\b)", parts[1], 1)[0]
        ops = [o.strip() for o in re.split(r",(?![^\[]*\])", body)]
    return op, ops, line
def classify(op, ops, line):
    w, r = [], []
    R = [regs(o) for o in ops]
    kind = "other"
    if op.startswith("v_mfma"):
        kind = "mfma"; w = R[0]; r = R[1]+R[2]; c = R[3]
        return kind, w, r, c
    if op.startswith("v_cmp"):
        kind = "valu"; w = R[0]; r = sum(R[1:], [])
    elif op.startswith("v_permlane"):
        kind = "perm"; w = R[0]+R[1]; r = R[0]+R[1]
    elif op.startswith("v_readfirstlane") or op.startswith("v_readlane"):
        kind = "rfl"; w = R[0]; r = sum(R[1:], [])
    elif op.startswith("v_"):
        kind = "trans" if op in TRANS else "valu"
        w = R[0]; r = sum(R[1:], [])
        if op in ("v_fmac_f32",): r = r + R[0]
        if op.startswith("v_cndmask") and len(ops) == 4: pass
    elif op.startswith("ds_read"):
        kind = "ds"; w = R[0]; r = R[1]
    elif op.startswith("ds_write"):
        kind = "ds"; r = sum(R, [])
    elif op.startswith("buffer_load") or op.startswith("global_load"):
        kind = "vmem"
        if " lds" in line: r = sum(R, []) + [("s", "m0")]
        else: w = R[0]; r = sum(R[1:], [])
    elif op.startswith("buffer_store") or op.startswith("buffer_atomic"):
        kind = "store"; r = sum(R, [])
    elif op.startswith("s_"):
        kind = "salu"
        if op.startswith("s_cmp") or op in ("s_waitcnt", "s_barrier", "s_nop", "s_branch", "s_sleep", "s_setprio", "s_endpgm") or op.startswith("s_cbranch"):
            r = sum(R, [])
        else:
            w = R[0]; r = sum(R[1:], [])
    return kind, w, r, []
def check(text):
    ins = []
    for ln, line in enumerate(text.split("\n"), 1):
        p = parse(line)
        if p: ins.append((ln,)+p)
    pos = 0
    lastw = {}
    lastc = {}
    lastst = {}
    errs = []
    for ln, op, ops, line in ins:
        kind, w, r, c = classify(op, ops, line)
        mo = re.search(r"offset:(\d+)", line)
        if mo:
            lim = 4095 if op.startswith("buffer") or op.startswith("global") else 65535
            if int(mo.group(1)) > lim: errs.append(f"line {ln}: offset too large: {line}")
        for mo in re.finditer(r"offset[01]:(\d+)", line):
            if int(mo.group(1)) > 255: errs.append(f"line {ln}: offset too large: {line}")
        mo = re.search(r"vmcnt\((\d+)\)", line)
        if mo and int(mo.group(1)) > 63: errs.append(f"line {ln}: vmcnt too large: {line}")
        mo = re.search(r"lgkmcnt\((\d+)\)", line)
        if mo and int(mo.group(1)) > 15: errs.append(f"line {ln}: lgkmcnt too large: {line}")
        def dist(p): return pos - p - 1
        def need(reg, n, why):
            p = lastw[reg][0]
            if dist(p) < n: errs.append(f"line {ln}: {why} {reg} dist {dist(p)} < {n}: {line}")
        for reg in r + c:
            if reg not in lastw: continue
            pk = lastw[reg][1]
            if pk == "mfma":
                if kind == "mfma" and reg in c and reg not in r:
                    if lastw[reg][2] != tuple(c): need(reg, 6, "mfma->srcC overlap")
                else: need(reg, 8, "mfma D read")
            elif pk in ("valu", "trans", "perm", "rfl"):
                if reg[0] == "v":
                    if kind == "mfma": need(reg, 2, "valu->mfma")
                    if kind == "perm": need(reg, 2, "valu->permlane")
                    if kind == "rfl": need(reg, 1, "valu->readlane")
                    if pk == "trans" and kind in ("valu", "perm", "mfma", "rfl"): need(reg, 1, "trans->valu")
                else:
                    if kind in ("vmem", "store"): need(reg, 5, "valu sgpr->vmem")
                    if kind in ("valu", "trans"): need(reg, 2, "valu sgpr->valu")
            elif pk == "salu" and reg == ("s", "m0") and kind == "vmem": need(reg, 1, "m0->dma")
        if op.startswith("v_cndmask") and ("s", "vcc") in lastw and lastw[("s", "vcc")][1] == "valu" and "vcc" in line:
            need(("s", "vcc"), 2, "vcc->cndmask")
        for reg in w:
            if reg in lastw and lastw[reg][1] == "mfma" and kind != "mfma": need(reg, 8, "mfma D overwrite")
            if reg in lastw and lastw[reg][1] == "mfma" and kind == "mfma" and not c and lastw[reg][2] != tuple(w): need(reg, 6, "mfma WAW")
            if reg in lastc and kind in ("valu", "trans", "perm") and dist(lastc[reg]) < 3:
                errs.append(f"line {ln}: srcC WAR {reg}: {line}")
            if reg in lastst and kind in ("valu", "trans", "perm", "mfma") and dist(lastst[reg]) < 2:
                errs.append(f"line {ln}: store data WAR {reg}: {line}")
        for reg in w: lastw[reg] = (pos, kind, tuple(w))
        for reg in c: lastc[reg] = pos
        if kind == "store" and ("x4" in op or "x3" in op):
            for reg in regs(ops[0]): lastst[reg] = pos
        if op == "s_nop": pos += int(ops[0], 0) + 1
        else: pos += 1
    return errs
if __name__ == "__main__":
    e = check(open(sys.argv[1]).read())
    for x in e: print(x)
    print(len(e), "hazard findings")
```

```python
import sys, argparse

KNAME = "parallel_sum__sliding_local_dilated__glu_gated_reglu__prompt_kernel"

WR = [0, 40960]
XR = [81920, 98304]
HALO = [114688, 116736]
STG = 118784
CSUM = 151552
MEAN = 152832
RSTD = 153408
EX = 153984
LDS_BYTES = 163840
FLAGS = 16 << 20
STATS = FLAGS + (64 << 10)
COLS = FLAGS + (128 << 10)
STAMP = 200 << 20

SX, SQ, SG, SU, SD, SO, SW, SOUT, SDBG = 24, 28, 32, 36, 40, 44, 48, 52, 56
def srd(n): return f"s[{n}:{n+3}]"
sWAVE, sRB, sCS, sROT, sRT, sCT, sJ, sT0, sT1, sT2, sT3 = 60, 61, 62, 63, 64, 65, 66, 67, 68, 69, 70
sXB, sQB, sGB, sMB, sHB = 71, 72, 73, 74, 75
sX0, sQ0, sG0, sM0 = 76, 77, 78, 79
sJ2K, sJ4K, sJH, sSTG, sN6, sSO = 80, 81, 82, 83, 84, 85
sMASK = 86
sKB = 88
sCLS, sLOOP, sRR = 97, 98, 99
sFL = 100
sP0 = 2


class G:
    def __init__(self, stamps=False, opts=None):
        self.L = []
        self.stamps = stamps
        self.o = opts or {}

    def __call__(self, s):
        for l in s.split("\n"):
            l = l.strip()
            if l: self.L.append("    " + l)

    def lab(self, n): self.L.append(n + ":")
    def c(self, s): self.L.append("    ; " + s)
    def align(self, n=3): self.L.append(f"    .p2align {n}")
    def text(self): return "\n".join(self.L) + "\n"
    def stamp(self, k):
        self.hstamp(f"c{k}")
    def hstamp(self, key):
        if not self.stamps: return
        lst = self.o.get("hst", [f"c{k}" for k in range(1, 9)])
        ins = "s_memtime" if self.o.get("cyc") else "s_memrealtime"
        if key == "c0": self(f"{ins} s[4:5]")
        elif key in lst:
            k = 1 + lst.index(key)
            assert k <= 8
            self(f"{ins} s[{4+2*k}:{5+2*k}]")


def v(n, w=1): return f"v{n}" if w == 1 else f"v[{n}:{n+w-1}]"
def mfma(g, d, a, b): g(f"v_mfma_f32_16x16x32_bf16 {v(d,4)}, {v(a,4)}, {v(b,4)}, {v(d,4)}")
def mfma0(g, d, a, b): g(f"v_mfma_f32_16x16x32_bf16 {v(d,4)}, {v(a,4)}, {v(b,4)}, 0")
def mfma16(g, d, a, b): g(f"v_mfma_f32_16x16x16_bf16 {v(d,4)}, {v(a,2)}, {v(b,2)}, 0")

def bsel(hi, pos, n):
    lo = [0]*n; h = [1]*n
    lo[pos] = hi; h[pos] = hi
    return f"op_sel:[{','.join(map(str,lo))}] op_sel_hi:[{','.join(map(str,h))}]"
def pkfma_negb(g, d, a, bb, hi=0):
    g(f"v_pk_fma_f32 {v(d,2)}, {v(a,2)}, {v(bb,2)}, {v(d,2)} {bsel(hi,1,3)} neg_lo:[0,1,0] neg_hi:[0,1,0]")
def pkmul_b(g, d, bb, hi=0): g(f"v_pk_mul_f32 {v(d,2)}, {v(d,2)}, {v(bb,2)} {bsel(hi,1,2)}")
def pkmul(g, d, a): g(f"v_pk_mul_f32 {v(d,2)}, {v(d,2)}, {v(a,2)}")
def cvt(g, d, a): g(f"v_cvt_pk_bf16_f32 v{d}, v{a}, v{a+1}")


def prologue(g):
    g("s_cmp_ge_u32 s2, 256\ns_cbranch_scc1 L_end")
    g("s_load_dwordx4 s[4:7], s[0:1], 0")
    g("s_load_dwordx2 s[8:9], s[0:1], 16")
    g("s_load_dwordx8 s[12:19], s[0:1], 32")
    g("s_load_dwordx4 s[20:23], s[0:1], 64")
    g.c("pull the code into L2 (512 lanes x 128 B); result unused")
    g(f"s_getpc_b64 s[{sT1}:{sT2}]\nv_lshlrev_b32 v2, 7, v0")
    g(f"global_load_dword v255, v2, s[{sT1}:{sT2}]")
    g("v_lshrrev_b32 v1, 6, v0\nv_and_b32 v0, 63, v0")
    g(f"s_and_b32 s{sT0}, s2, 7\ns_lshr_b32 s{sT1}, s2, 3")
    g(f"v_readfirstlane_b32 s{sWAVE}, v1")
    g(f"s_and_b32 s{sRB}, s{sT0}, 1\ns_lshl_b32 s{sRB}, s{sRB}, 2\ns_and_b32 s{sT2}, s{sT1}, 3\ns_add_u32 s{sRB}, s{sRB}, s{sT2}")
    g(f"s_and_b32 s{sT3}, s{sT1}, 8\ns_add_u32 s{sRB}, s{sRB}, s{sT3}")
    g(f"s_and_b32 s{sCS}, s{sT0}, 6\ns_bfe_u32 s{sT3}, s{sT1}, 0x10002\ns_add_u32 s{sCS}, s{sCS}, s{sT3}")
    g(f"s_lshr_b32 s{sT3}, s{sT1}, 4\ns_lshl_b32 s{sT3}, s{sT3}, 3\ns_add_u32 s{sCS}, s{sCS}, s{sT3}")
    g(f"s_add_u32 s{sROT}, s{sRB}, s{sCS}\ns_and_b32 s{sROT}, s{sROT}, 7")
    g(f"s_lshl_b32 s{sRT}, s{sT0}, 2\ns_add_u32 s{sRT}, s{sRT}, s{sT2}\ns_lshr_b32 s{sCT}, s{sT1}, 2")
    g(f"s_and_b32 s{sJ}, s{sWAVE}, 3")
    g(f"s_lshl_b32 s{sJ2K}, s{sJ}, 11\ns_lshl_b32 s{sJ4K}, s{sJ}, 12\ns_lshl_b32 s{sJH}, s{sJ}, 9")
    g(f"s_lshl_b32 s{sSTG}, s{sJ}, 13\ns_add_u32 s{sSTG}, s{sSTG}, {STG}")
    g(f"s_add_u32 s{sN6}, s{sJ4K}, {WR[0]+32768}\ns_cmp_ge_u32 s{sJ}, 2\ns_cselect_b32 s{sT3}, {WR[1]-WR[0]-8192}, 0\ns_add_u32 s{sN6}, s{sN6}, s{sT3}")
    g(f"s_and_b32 s{sCLS}, s{sROT}, 1\ns_lshl_b32 s{sCLS}, s{sCLS}, 1\ns_lshr_b32 s{sT3}, s{sRB}, 3\ns_add_u32 s{sCLS}, s{sCLS}, s{sT3}")
    for n, sz in ((SX, 2048*1024), (SQ, 512*3072), (SG, 512*3584), (SU, 512*3584), (SD, 1792*1024), (SO, 512*1024),
                  (SW, 256 << 20), (SOUT, 2048*1024), (SDBG, 256)):
        g(f"s_mov_b32 s{n+2}, {sz}\ns_mov_b32 s{n+3}, 0x20000")
    g("s_waitcnt lgkmcnt(0)")
    for n, p in ((SX, 4), (SQ, 6), (SO, 8), (SG, 12), (SU, 14), (SD, 16), (SOUT, 18), (SDBG, 20), (SW, 22)):
        g(f"s_mov_b32 s{n}, s{p}\ns_mov_b32 s{n+1}, s{p+1}")
    g.stamp(0)
    g(f"s_cmp_lt_u32 s{sWAVE}, 4\ns_cbranch_scc1 L_C")


def kappa_offsets(g):
    g(f"s_add_u32 s{sRR}, s{sRT}, s{sCT}")
    g(f"s_mul_i32 s{sT0}, s{sRR}, 52\ns_lshr_b32 s{sT0}, s{sT0}, 8\ns_mul_i32 s{sT0}, s{sT0}, 5\ns_sub_u32 s{sT0}, s{sRR}, s{sT0}")
    g(f"s_mul_i32 s{sT1}, s{sWAVE}, 5\ns_add_u32 s{sT1}, s{sT1}, 16")
    g(f"s_lshl_b32 s{sT3}, s{sCT}, 7")
    for i in range(5):
        g(f"s_add_u32 s{sT2}, s{sT0}, {i}\ns_cmp_ge_u32 s{sT2}, 5\ns_cselect_b32 s{sKB+i}, 5, 0\ns_sub_u32 s{sT2}, s{sT2}, s{sKB+i}")
        g(f"s_add_u32 s{sT2}, s{sT2}, s{sT1}\ns_lshl_b32 s{sT2}, s{sT2}, 15\ns_add_u32 s{sKB+i}, s{sT2}, s{sT3}")
    g(f"s_and_b32 s{sT0}, s{sRR}, 1\ns_lshl_b32 s{sT1}, s{sWAVE}, 1")
    for i in range(2):
        g(f"s_xor_b32 s{sT2}, s{sT0}, {i}\ns_add_u32 s{sT2}, s{sT2}, s{sT1}\ns_lshl_b32 s{sT2}, s{sT2}, 15\ns_add_u32 s{sKB+5+i}, s{sT2}, s{sT3}")
        g(f"s_mov_b32 s{sKB+7+i}, s{sKB+5+i}")

def w2srd(i): return srd(SD) if i < 7 else srd(SO)


def stats_slot(g, sdst):
    g(f"s_lshl_b32 s{sdst}, s{sRB}, 12\ns_lshr_b32 s{sT3}, s{sROT}, 1\ns_lshl_b32 s{sT3}, s{sT3}, 10\ns_add_u32 s{sdst}, s{sdst}, s{sT3}")
    g(f"s_and_b32 s{sT3}, s{sROT}, 1\ns_lshl_b32 s{sT3}, s{sT3}, 9\ns_add_u32 s{sdst}, s{sdst}, s{sT3}")
    g(f"s_lshr_b32 s{sT3}, s{sCS}, 3\ns_lshl_b32 s{sT3}, s{sT3}, 8\ns_add_u32 s{sdst}, s{sdst}, s{sT3}\ns_add_u32 s{sdst}, s{sdst}, {STATS}")

def cols_panel(g, sdst):
    g(f"s_add_u32 s{sdst}, s{sCLS}, 1\ns_cmp_eq_u32 s{sCLS}, 0\ns_cselect_b32 s{sdst}, s{sJ}, s{sdst}")

def cols_slot(g, sdst):
    cols_panel(g, sdst)
    g(f"s_lshl_b32 s{sdst}, s{sdst}, 8")
    g(f"s_lshr_b32 s{sT3}, s{sROT}, 1\ns_mul_i32 s{sT3}, s{sT3}, 1280\ns_add_u32 s{sdst}, s{sdst}, s{sT3}")
    g(f"s_lshl_b32 s{sT3}, s{sCS}, 13\ns_add_u32 s{sdst}, s{sdst}, s{sT3}\ns_add_u32 s{sdst}, s{sdst}, {COLS}")


ACC, XF, WF = 0, 160, 192
vWA, vXA, vLANE = 224, 228, 230
def accr(p, tl, t): return ACC + ((p*2+tl)*4+t)*4


def c_setup(g):
    g.c("C wave setup")
    g(f"s_cmp_lg_u32 s{sWAVE}, 0\ns_cbranch_scc1 L_c_noclr")
    g("v_mov_b32 v248, -1\nv_mov_b32 v249, -1\nv_mov_b32 v250, 0\nv_lshlrev_b32 v251, 2, v0\nv_lshlrev_b32 v252, 3, v0")
    stats_slot(g, sT2)
    g("s_mov_b32 exec_hi, 0")
    g(f"buffer_store_dwordx2 v[248:249], v252, {srd(SW)}, s{sT2} offen sc1")
    g("s_mov_b64 exec, -1")
    cols_slot(g, sT2)
    g(f"buffer_store_dword v248, v251, {srd(SW)}, s{sT2} offen sc1")
    g(f"s_cmp_lg_u32 s{sCLS}, 0\ns_cbranch_scc1 L_c_clr1")
    g(f"buffer_store_dword v248, v251, {srd(SW)}, s{sT2} offen offset:256 sc1")
    g.lab("L_c_clr1")
    g(f"s_lshl_b32 s{sT2}, s{sRB}, 4\ns_add_u32 s{sT2}, s{sT2}, s{sCS}\ns_lshl_b32 s{sT2}, s{sT2}, 7\ns_add_u32 s{sT2}, s{sT2}, {FLAGS}")
    g("s_mov_b64 exec, 15")
    g(f"buffer_store_dword v250, v251, {srd(SW)}, s{sT2} offen sc1")
    g("s_mov_b64 exec, -1")
    g.lab("L_c_noclr")
    g(f"s_and_b32 s{sT0}, s{sWAVE}, 1\ns_lshl_b32 s{sT0}, s{sT0}, 1")
    g(f"s_lshr_b32 s{sT1}, s{sWAVE}, 1\ns_lshl_b32 s{sT1}, s{sT1}, 13\ns_add_u32 s{sT1}, s{sT1}, {XR[0]}")
    g("v_lshrrev_b32 v4, 4, v0\nv_bfe_u32 v5, v0, 2, 2\nv_and_b32 v6, 3, v0")
    g("v_lshl_add_u32 v7, v4, 3, v5\nv_lshlrev_b32 v7, 7, v7\nv_lshl_add_u32 v7, v6, 3, v7")
    g("v_lshrrev_b32 v14, 1, v5\nv_and_b32 v15, 1, v4\nv_lshl_add_u32 v14, v15, 1, v14")
    g(f"v_xor_b32 v14, s{sT0}, v14")
    g(f"v_lshl_add_u32 v{vWA}, v14, 5, v7\nv_xor_b32 v14, 1, v14\nv_lshl_add_u32 v{vWA+1}, v14, 5, v7")
    g(f"v_add_u32 v{vWA+2}, {WR[1]}, v{vWA}\nv_add_u32 v{vWA+3}, {WR[1]}, v{vWA+1}")
    g("v_and_b32 v5, 15, v0\nv_lshrrev_b32 v6, 1, v5\nv_xor_b32 v6, v6, v4")
    g(f"v_lshl_add_u32 v7, v5, 7, s{sT1}")
    g(f"v_lshl_add_u32 v{vXA}, v6, 4, v7\nv_xor_b32 v6, 4, v6\nv_lshl_add_u32 v{vXA+1}, v6, 4, v7")
    g(f"v_mov_b32 v{vLANE}, v0")
    kappa_offsets(g)
    for r in range(ACC, ACC+160): g(f"v_mov_b32 v{r}, 0")
    g(f"s_cmp_lg_u32 s{sWAVE}, 0\ns_cbranch_scc1 L_c_nocnt")
    g(f"v_mov_b32 v253, 1\nv_mov_b32 v250, 0\ns_and_b32 s{sT2}, s2, 1\ns_lshl_b32 s{sT2}, s{sT2}, 7")
    g("s_mov_b64 exec, 1")
    g("s_waitcnt vmcnt(0)")
    g(f"buffer_atomic_add v253, v250, {srd(SDBG)}, s{sT2} offen sc1")
    g("s_mov_b64 exec, -1")
    g.lab("L_c_nocnt")


def c_wrd(par, p, slot):
    b = WF + 16*slot
    return [f"ds_read_b64_tr_b16 {v(b+tl*8+j*4+h*2,2)}, v{vWA+2*par+tl} offset:{p*8192 + j*4096 + h*512}"
            for tl in range(2) for j in range(2) for h in range(2)]

def c_xrd(par, t):
    return [f"ds_read_b128 {v(XF+t*8+j*4,4)}, v{vXA+j} offset:{par*16384 + t*2048}" for j in range(2)]


def c_kloop(g, typ):
    L = f"L_ck{typ}"
    g("s_barrier")
    g.stamp(1)
    w = c_wrd(0, 0, 0)
    for l in w[:4]: g(l)
    for l in c_xrd(0, 0): g(l)
    for l in w[4:]: g(l)
    for t in range(1, 4):
        for l in c_xrd(0, t): g(l)
    g(f"s_mov_b32 s{sLOOP}, 0")
    g.align(3)
    g.lab(L)
    gp = 0
    for par in range(2):
        for p in range(5):
            slot = gp % 2
            nx = c_wrd(par, p+1, 1-slot) if p < 4 else c_wrd(1-par, 0, 1-slot)
            g("s_waitcnt lgkmcnt(6)" if p == 0 else "s_waitcnt lgkmcnt(0)")
            if p in (1, 4): g("s_barrier")
            b = WF + 16*slot
            ri = 0
            swap = (typ == "A" and p == 1)
            for t in range(4):
                if p == 0 and t > 0:
                    g(f"s_waitcnt lgkmcnt({6-2*t + ri})")
                for tl in range(2):
                    for j in range(2):
                        wf, xf = b+tl*8+j*4, XF+t*8+j*4
                        if swap: mfma(g, accr(p, tl, t), xf, wf)
                        else: mfma(g, accr(p, tl, t), wf, xf)
                        if ri < 8:
                            g(nx[ri]); ri += 1
                if p == 4:
                    for l in c_xrd(1-par, t): g(l)
            gp += 1
    g(f"s_add_u32 s{sLOOP}, s{sLOOP}, 1\ns_cmp_lt_u32 s{sLOOP}, 4\ns_cbranch_scc1 {L}")
    g("s_waitcnt lgkmcnt(0)")
    g.stamp(2)


def ffn_pair(g, ga, ua, csg, csu, mr, dst):
    pkfma_negb(g, ga, csg, mr); pkfma_negb(g, ga+2, csg+2, mr)
    pkfma_negb(g, ua, csu, mr); pkfma_negb(g, ua+2, csu+2, mr)
    for k in range(4): g(f"v_max_f32 v{ga+k}, 0, v{ga+k}")
    pkmul_b(g, ua, mr, 1); pkmul_b(g, ua+2, mr, 1)
    pkmul(g, ga, ua); pkmul(g, ga+2, ua+2)
    cvt(g, dst, ga); cvt(g, dst+1, ga+2)


MR = 160
def c_epi_common(g):
    g(f"v_and_b32 v232, 15, v{vLANE}\nv_lshrrev_b32 v233, 4, v{vLANE}")
    g(f"s_lshr_b32 s{sT0}, s{sWAVE}, 1\ns_and_b32 s{sT1}, s{sWAVE}, 1")
    g(f"s_lshl_b32 s{sT2}, s{sT0}, 8\ns_add_u32 s{sT2}, s{sT2}, {MEAN}")
    g(f"v_lshl_add_u32 v234, v232, 2, s{sT2}")
    g(f"v_lshl_add_u32 v235, v233, 4, s{sT2}")
    g(f"s_lshl_b32 s{sT2}, s{sT1}, 7\ns_add_u32 s{sT2}, s{sT2}, {CSUM}")
    g(f"v_lshl_add_u32 v236, v233, 4, s{sT2}")
    g(f"v_lshl_add_u32 v237, v232, 2, s{sT2}")
    for t in range(4):
        g(f"ds_read2_b32 {v(MR+2*t,2)}, v234 offset0:{t*16} offset1:{t*16 + (RSTD-MEAN)//4}")
    g(f"v_lshlrev_b32 v231, 4, v{vLANE}")
    g(f"s_lshl_b32 s{sHB}, s{sRB}, 1\ns_add_u32 s{sHB}, s{sHB}, s{sT0}\ns_mul_i32 s{sHB}, s{sHB}, {72*4096}")


def c_flag(g, bs=False):
    g.c("publish: drain own stores, then set this wave's flag")
    g(f"s_lshl_b32 s{sT2}, s{sRB}, 4\ns_add_u32 s{sT2}, s{sT2}, s{sCS}\ns_lshl_b32 s{sT2}, s{sT2}, 7\ns_lshl_b32 s{sT3}, s{sWAVE}, 2")
    g(f"s_add_u32 s{sT2}, s{sT2}, s{sT3}\ns_add_u32 s{sT2}, s{sT2}, {FLAGS}")
    g("v_mov_b32 v238, 1\nv_mov_b32 v239, 0")
    g.hstamp("e")
    if bs: g("s_barrier")
    g("s_waitcnt vmcnt(0)")
    g("s_mov_b64 exec, 1")
    g(f"buffer_store_dword v238, v239, {srd(SW)}, s{sT2} offen sc1")
    g("s_mov_b64 exec, -1")
    g.stamp(3)


def c_epi_B(g):
    g.c("type B epilogue: panels G0,U0,G1,U1,M")
    c_epi_common(g)
    CS = 168
    for p in range(5):
        for tl in range(2):
            g(f"ds_read_b128 {v(CS+(p*2+tl)*4,4)}, v236 offset:{p*256 + tl*64}")
    g(f"s_and_b32 s{sT2}, s{sCS}, 7\ns_mul_i32 s{sT2}, s{sT2}, 5\ns_add_u32 s{sT2}, s{sT2}, 16")
    g(f"s_and_b32 s{sT3}, s{sCS}, 1")
    g(f"s_add_u32 s{sXB}, s{sT2}, s{sT3}\ns_add_u32 s{sXB}, s{sXB}, s{sT1}\ns_lshl_b32 s{sXB}, s{sXB}, 12\ns_add_u32 s{sXB}, s{sXB}, s{sHB}")
    g(f"s_xor_b32 s{sT3}, s{sT3}, 1\ns_lshl_b32 s{sT3}, s{sT3}, 2\ns_add_u32 s{sQB}, s{sT2}, s{sT3}\ns_lshl_b32 s{sQB}, s{sQB}, 12\ns_add_u32 s{sQB}, s{sQB}, s{sHB}")
    g(f"s_lshl_b32 s{sT3}, s{sT1}, 3\ns_add_u32 s{sQB}, s{sQB}, s{sT3}")
    g(f"s_add_u32 s{sGB}, s{sXB}, 8192")
    g("s_waitcnt lgkmcnt(0)")
    for t in range(4): g(f"v_mul_f32 v{MR+2*t+1}, v{MR+2*t+1}, v{MR+2*t+1}")
    n = 0
    for f in range(2):
        for t in range(4):
            d = 208 + 4*(n % 2); n += 1
            for tl in range(2):
                ffn_pair(g, accr(2*f, tl, t), accr(2*f+1, tl, t), CS+((2*f)*2+tl)*4, CS+((2*f+1)*2+tl)*4, MR+2*t, d+2*tl)
            g(f"buffer_store_dwordx4 {v(d,4)}, v231, {srd(SW)}, s{sXB if f == 0 else sGB} offen offset:{t*1024} sc1")
    for t in range(4):
        d = 208 + 4*(n % 2); n += 1
        ffn_pair(g, accr(4, 0, t), accr(4, 1, t), CS+32, CS+36, MR+2*t, d)
        g(f"buffer_store_dwordx2 {v(d,2)}, v231, {srd(SW)}, s{sQB} offen offset:{t*1024} sc1")
    c_flag(g, bs=g.o.get("bs", 1))


def c_epi_A(g):
    g.c("type A epilogue: panels K,V(swapped),Q,G,U")
    c_epi_common(g)
    CS = 168
    CV = 200
    RV = {2: 240, 3: 248, 0: 240, 1: 248}
    VP = lambda hh, par: 204 + (hh*2+par)*6
    Kp = lambda hh, t: accr(0, hh, t)
    Qp = lambda hh, t: accr(2, hh, t)
    for tl in range(2):
        g(f"ds_read_b128 {v(CS+tl*4,4)}, v236 offset:{tl*64}")
    g(f"ds_read2_b32 {v(CV,2)}, v237 offset0:64 offset1:80")
    def rowstats(t):
        g(f"ds_read_b128 {v(RV[t],4)}, v235 offset:{t*64}")
        g(f"ds_read_b128 {v(RV[t]+4,4)}, v235 offset:{t*64 + RSTD - MEAN}")
    rowstats(2); rowstats(3)
    g("s_waitcnt lgkmcnt(0)")
    for k, p in ((1, 2), (2, 3), (3, 4)):
        for tl in range(2):
            g(f"ds_read_b128 {v(CS+(k*2+tl)*4,4)}, v236 offset:{p*256 + tl*64}")
    def fix_tok(a, cs, t, dst):
        pkfma_negb(g, a, cs, MR+2*t); pkfma_negb(g, a+2, cs+2, MR+2*t)
        pkmul_b(g, a, MR+2*t, 1); pkmul_b(g, a+2, MR+2*t, 1)
        cvt(g, dst, a); cvt(g, dst+1, a+2)
    def fix_row(hh, t):
        a = accr(1, hh, t); dst = VP(hh, t & 1) + 2 + 2*(t >> 1)
        pkfma_negb(g, a, RV[t], CV, hh); pkfma_negb(g, a+2, RV[t]+2, CV, hh)
        pkmul(g, a, RV[t]+4); pkmul(g, a+2, RV[t]+6)
        cvt(g, dst, a); cvt(g, dst+1, a+2)
    for t in (2, 3):
        for hh in range(2): fix_row(hh, t)
    rowstats(0); rowstats(1)
    for t in (2, 3):
        for hh in range(2): fix_tok(accr(0, hh, t), CS+hh*4, t, Kp(hh, t))
    g(f"v_and_b32 v202, 7, v232\nv_lshl_add_u32 v202, v233, 3, v202\nv_lshlrev_b32 v202, 3, v202")
    g(f"v_and_b32 v203, 1, v233\nv_lshl_add_u32 v203, v203, 4, v232\nv_lshlrev_b32 v203, 3, v203")
    g(f"s_lshl_b32 s{sT2}, s{sT1}, 11\ns_add_u32 s{sT2}, s{sT2}, {EX}")
    g(f"v_add_u32 v202, s{sT2}, v202\nv_add_u32 v203, s{sT2}, v203")
    g(f"s_cmp_ge_u32 s{sWAVE}, 2\ns_cbranch_scc1 L_a_noexp")
    g("s_mov_b32 exec_lo, 0xff00ff00\ns_mov_b32 exec_hi, 0xff00ff00")
    for hh in range(2):
        for par in range(2):
            g(f"ds_write_b64 v202, {v(Kp(hh, 2+par),2)} offset:{4096 + hh*1024 + par*512}")
    g("s_mov_b32 exec_lo, 0\ns_mov_b32 exec_hi, -1")
    for hh in range(2):
        for par in range(2):
            g(f"ds_write_b64 v203, {v(VP(hh,par)+4,2)} offset:{4096 + hh*1024 + par*512 + 256}")
    g("s_mov_b64 exec, -1")
    g.lab("L_a_noexp")
    g(f"s_lshl_b32 s{sT2}, s{sT0}, 12")
    g(f"v_add_u32 v202, s{sT2}, v202\nv_add_u32 v203, s{sT2}, v203")
    g("s_waitcnt lgkmcnt(0)")
    for t in (0, 1):
        for hh in range(2): fix_row(hh, t)
    for t in (0, 1):
        for hh in range(2): fix_tok(accr(0, hh, t), CS+hh*4, t, Kp(hh, t))
    for t in range(4):
        for hh in range(2): fix_tok(accr(2, hh, t), CS+8+hh*4, t, Qp(hh, t))
    g.hstamp("a1")
    g(f"s_lshl_b32 s{sT2}, s{sCS}, 1\ns_add_u32 s{sT2}, s{sT2}, s{sT1}\ns_lshl_b32 s{sT2}, s{sT2}, 12\ns_add_u32 s{sXB}, s{sT2}, s{sHB}")
    g(f"s_add_u32 s{sQB}, s{sXB}, {56*4096}")
    for t in range(4): g(f"v_mul_f32 v{MR+2*t+1}, v{MR+2*t+1}, v{MR+2*t+1}")
    for t in range(4):
        d = 240 + 4*(t % 2)
        for tl in range(2):
            ffn_pair(g, accr(3, tl, t), accr(4, tl, t), CS+16+tl*4, CS+24+tl*4, MR+2*t, d+2*tl)
        g(f"buffer_store_dwordx4 {v(d,4)}, v231, {srd(SW)}, s{sXB} offen offset:{t*1024} sc1")
    g.hstamp("a2")
    MO, MP, MP0, ONE = 168, 172, 176, 180
    g("v_lshlrev_b32 v184, 2, v233\nv_sub_u32 v184, v232, v184")
    g("v_mov_b32 v185, 0xff800000\nv_mov_b32 v186, 0")
    for r in range(4):
        g(f"v_subrev_u32 v187, {r}, v184")
        g(f"v_cmp_gt_u32 vcc, 8, v187\nv_add_u32 v187, 8, v187\ns_nop 0\nv_cndmask_b32 v{MO+r}, v185, v186, vcc")
        g(f"v_cmp_gt_i32 vcc, 0, v187\ns_nop 1\nv_cndmask_b32 v{MP+r}, v185, v186, vcc")
    g(f"s_or_b32 s{sT2}, s{sRB}, s{sT0}\ns_cmp_eq_u32 s{sT2}, 0\ns_cselect_b64 vcc, -1, 0")
    for r in range(4):
        g(f"v_cndmask_b32 v{MP0+r}, v{MP+r}, v185, vcc")
        g(f"v_mov_b32 v{ONE+r}, 0x3f803f80")
    g(f"s_mov_b32 s{sMASK}, 0x3eb8aa3b\ns_mov_b32 s{sMASK+1}, 0x3eb8aa3b")
    EK = 184
    def batch(ts):
        units = [(hh, t) for t in ts for hh in range(2)]
        S = lambda u: 96 + 8*u
        Mx = lambda u: 128 + 2*u
        P = lambda u: 136 + 4*u
        O = lambda u: 96 + 8*u
        for u, (hh, t) in enumerate(units):
            kp = EK + (hh*2+t)*2 if t < 2 else Kp(hh, t-2)
            mfma16(g, S(u), kp, Qp(hh, t))
            mfma16(g, S(u)+4, Kp(hh, t), Qp(hh, t))
        g("s_nop 3")
        for u, (hh, t) in enumerate(units):
            mp = MP0 if t < 2 else MP
            for k in range(2):
                g(f"v_pk_fma_f32 {v(S(u)+2*k,2)}, {v(S(u)+2*k,2)}, s[{sMASK}:{sMASK+1}], {v(mp+2*k,2)}")
            for k in range(2):
                g(f"v_pk_fma_f32 {v(S(u)+4+2*k,2)}, {v(S(u)+4+2*k,2)}, s[{sMASK}:{sMASK+1}], {v(MO+2*k,2)}")
        for u in range(4): g(f"v_max3_f32 v{Mx(u)}, v{S(u)}, v{S(u)+1}, v{S(u)+2}")
        for u in range(4): g(f"v_max3_f32 v{Mx(u)}, v{Mx(u)}, v{S(u)+3}, v{S(u)+4}")
        for u in range(4): g(f"v_max3_f32 v{Mx(u)}, v{Mx(u)}, v{S(u)+5}, v{S(u)+6}")
        for u in range(4): g(f"v_max_f32 v{Mx(u)}, v{Mx(u)}, v{S(u)+7}")
        for sw in ("v_permlane32_swap_b32", "v_permlane16_swap_b32"):
            for u in range(4): g(f"v_mov_b32 v{Mx(u)+1}, v{Mx(u)}")
            g("s_nop 0")
            for u in range(4): g(f"{sw} v{Mx(u)}, v{Mx(u)+1}")
            for u in range(4): g(f"v_max_f32 v{Mx(u)}, v{Mx(u)}, v{Mx(u)+1}")
        for u in range(4):
            for k in range(4):
                g(f"v_pk_add_f32 {v(S(u)+2*k,2)}, {v(S(u)+2*k,2)}, {v(Mx(u),2)} op_sel_hi:[1,0] neg_lo:[0,1] neg_hi:[0,1]")
        for u in range(4):
            for k in range(8): g(f"v_exp_f32 v{S(u)+k}, v{S(u)+k}")
        g("s_nop 0")
        for u in range(4):
            for k in range(4): cvt(g, P(u)+k, S(u)+2*k)
        g("s_nop 0")
        for u, (hh, t) in enumerate(units):
            mfma0(g, O(u), VP(hh, t & 1) + 2*(t >> 1), P(u))
            mfma0(g, O(u)+4, ONE, P(u))
        g("s_nop 4")
        for u in range(4): g(f"v_rcp_f32 v{Mx(u)}, v{O(u)+4}")
        g("s_nop 0")
        for u in range(4):
            pkmul_b(g, O(u), Mx(u)); pkmul_b(g, O(u)+2, Mx(u))
        for u, (hh, t) in enumerate(units):
            d = 152 + 4*(u >> 1) + 2*hh
            cvt(g, d, O(u)); cvt(g, d+1, O(u)+2)
            if hh == 1:
                g(f"buffer_store_dwordx4 {v(d-2,4)}, v231, {srd(SW)}, s{sQB} offen offset:{t*1024} sc1")
    batch((2, 3))
    g.hstamp("a3")
    g("s_barrier")
    g.hstamp("a4")
    for hh in range(2):
        for par in range(2):
            g(f"ds_read_b64 {v(EK+(hh*2+par)*2,2)}, v202 offset:{hh*1024 + par*512}")
            g(f"ds_read_b64 {v(VP(hh,par),2)}, v203 offset:{hh*1024 + par*512 + 256}")
    g("s_waitcnt lgkmcnt(0)")
    batch((0, 1))
    c_flag(g)


W2F, HS, NHS, vHO = 64, 208, 11, 252
def w2_pattern(g, dst, lane, base_sgpr, t0):
    g(f"v_lshrrev_b32 v{t0}, 2, v{lane}\nv_and_b32 v{t0+1}, 3, v{lane}")
    g(f"v_lshlrev_b32 v{t0+2}, 7, v{t0}\nv_lshl_add_u32 v{t0+2}, v{t0+1}, 3, v{t0+2}\nv_add_u32 v{t0+2}, s{base_sgpr}, v{t0+2}")
    g(f"v_bfe_u32 v{t0}, v{t0}, 1, 2")
    for n in range(4):
        g(f"v_xor_b32 v{t0+1}, {n}, v{t0}\nv_lshl_add_u32 v{dst+n}, v{t0+1}, 5, v{t0+2}")

def w2_reads(i, areg, off):
    return [f"ds_read_b64_tr_b16 {v(W2F+(i*4+n)*4+2*h,2)}, v{areg+n} offset:{off + h*2048}" for n in range(4) for h in range(2)]


def c_w2(g):
    g.c("C waves: fetch their W2 fragments from LDS")
    A = 240
    w2_pattern(g, A, vLANE, sJ4K, 232)
    g("s_barrier")
    g.hstamp("cBW")
    for i, off in ((0, WR[0]), (2, WR[0]+16384), (3, WR[1]), (5, WR[1]+16384)):
        for l in w2_reads(i, A, off): g(l)
    g(f"s_sub_u32 s{sT0}, s{sN6}, s{sJ4K}\ns_sub_u32 s{sT1}, s{sSTG}, s{sJ4K}")
    for n in range(4): g(f"v_add_u32 v{A+4+n}, {XR[0]}, v{A+n}")
    for n in range(4): g(f"v_add_u32 v{A+8+n}, s{sT0}, v{A+n}")
    for n in range(4): g(f"v_add_u32 v{A+12+n}, s{sT1}, v{A+n}")
    for l in w2_reads(1, A+4, 0) + w2_reads(4, A+4, 16384) + w2_reads(6, A+8, 0) + w2_reads(7, A+12, 0) + w2_reads(8, A+12, 4096): g(l)
    g(f"v_mov_b32 v253, v{vLANE}")
    g("s_waitcnt lgkmcnt(0)")
    g("s_barrier")


hX, hXH, hQ, hG, hM, hW2, hA2, hHW, hHX, hCA, hSA, hLANE = 208, 212, 213, 215, 217, 219, 220, 224, 226, 228, 232, 233

class HQ:
    def __init__(self, g): self.g = g; self.q = []
    def op(self, tag): self.q.append(tag)
    def younger(self, tags):
        idx = max(i for i, t in enumerate(self.q) if t in tags)
        return len(self.q) - 1 - idx
    def mark(self): return len(self.q)
    def since(self, m): return len(self.q) - m


def dma(g, q, tag, vo, sr, so, m0base, m0const, fill="s_nop 0"):
    g(f"s_add_u32 m0, s{m0base}, {m0const}")
    g(fill)
    g(f"buffer_load_dwordx4 v{vo}, {sr}, s{so} offen lds")
    q.op(tag)


def h_setup(g, typ):
    g.c(f"H wave setup type {typ}")
    g("s_setprio 1")
    g("v_lshrrev_b32 v1, 3, v0\nv_and_b32 v2, 7, v0\nv_lshrrev_b32 v3, 1, v1")
    g(f"s_lshl_b32 s{sT0}, s{sJ}, 15")
    g(f"v_xor_b32 v4, v2, v3\nv_lshlrev_b32 v5, 11, v1\nv_add_u32 v5, s{sT0}, v5")
    g(f"v_lshl_add_u32 v{hX}, v4, 4, v5\nv_xor_b32 v4, 4, v4\nv_lshl_add_u32 v{hX+1}, v4, 4, v5\nv_add_u32 v{hX+1}, 16384, v{hX+1}")
    g(f"v_add_u32 v{hX+2}, 1024, v{hX}\nv_add_u32 v{hX+3}, 1024, v{hX+1}")
    g(f"s_lshl_b32 s{sT0}, s{sJ}, 4")
    g(f"v_and_b32 v4, 1, v3\nv_lshlrev_b32 v4, 1, v4\nv_xor_b32 v4, v4, v2\nv_xor_b32 v6, 4, v4")
    g(f"v_add_u32 v5, s{sT0}, v1\nv_add_u32 v7, 8, v5")
    g(f"v_mul_u32_u24 v8, 3584, v5\nv_mul_u32_u24 v9, 3584, v7")
    g(f"v_lshl_add_u32 v{hG}, v4, 4, v8\nv_lshl_add_u32 v{hG+1}, v6, 4, v9")
    g(f"s_lshl_b32 s{sX0}, s{sRB}, 17")
    if typ == "A":
        g(f"v_mul_u32_u24 v8, 3072, v5\nv_mul_u32_u24 v9, 3072, v7")
        g(f"v_lshl_add_u32 v{hQ}, v4, 4, v8\nv_lshl_add_u32 v{hQ+1}, v6, 4, v9")
        g(f"s_lshl_b32 s{sQ0}, s{sCS}, 7\ns_mov_b32 s{sG0}, s{sQ0}")
        g(f"s_lshl_b32 s{sT0}, s{sJ}, 2\nv_and_b32 v10, 3, v1\nv_add_u32 v10, s{sT0}, v10")
        g("v_and_b32 v11, 7, v10\nv_lshrrev_b32 v12, 3, v10\nv_lshl_add_u32 v11, v11, 1, v12\nv_lshlrev_b32 v11, 10, v11")
        g(f"v_lshrrev_b32 v12, 1, v10\nv_xor_b32 v12, v12, v2\nv_lshl_add_u32 v{hXH}, v12, 4, v11")
        g(f"s_cmp_eq_u32 s{sRB}, 0\ns_cselect_b32 s{sM0}, 0, 16384")
    else:
        for cc, row, dst in ((4, 8, hM), (6, 9, hM+1)):
            g(f"v_lshrrev_b32 v10, 2, v{cc}\nv_and_b32 v11, 1, v{cc}\nv_lshl_add_u32 v10, v10, 1, v11\nv_lshl_add_u32 v{dst}, v10, 4, v{row}")
        g(f"v_and_b32 v10, 2, v4\nv_cmp_eq_u32 s[{sMASK}:{sMASK+1}], 0, v10")
        g(f"s_and_b32 s{sT0}, s{sCS}, 7\ns_mul_i32 s{sT0}, s{sT0}, 320\ns_add_u32 s{sT0}, s{sT0}, 1024")
        g(f"s_and_b32 s{sT1}, s{sCS}, 1\ns_lshl_b32 s{sT2}, s{sT1}, 6\ns_add_u32 s{sG0}, s{sT0}, s{sT2}")
        g(f"s_xor_b32 s{sT1}, s{sT1}, 1\ns_lshl_b32 s{sT1}, s{sT1}, 8\ns_add_u32 s{sM0}, s{sT0}, s{sT1}")


def h_slabbase(g, typ, s):
    g(f"s_add_u32 s{sT0}, s{sROT}, {s}\ns_and_b32 s{sT0}, s{sT0}, 7")
    g(f"s_lshl_b32 s{sXB}, s{sT0}, 7\ns_add_u32 s{sXB}, s{sXB}, s{sX0}")
    g(f"s_mul_i32 s{sT1}, s{sT0}, {64*3584}\ns_add_u32 s{sGB}, s{sT1}, s{sG0}")
    if typ == "A":
        g(f"s_mul_i32 s{sQB}, s{sT0}, {64*3072}\ns_add_u32 s{sQB}, s{sQB}, s{sQ0}\ns_sub_u32 s{sMB}, s{sXB}, s{sM0}")
    else:
        g(f"s_add_u32 s{sMB}, s{sT1}, s{sM0}")


def h_panel(g, q, tag, typ, par, p):
    base = WR[par] + p*8192
    if typ == "A":
        vo, sr, so, off = [(hQ, SQ, sQB, 1024), (hQ, SQ, sQB, 2048), (hQ, SQ, sQB, 0), (hG, SG, sGB, 0), (hG, SU, sGB, 0)][p]
    else:
        if p == 4:
            g(f"s_mov_b64 exec, s[{sMASK}:{sMASK+1}]")
            for b in range(2): dma(g, q, tag, hM+b, srd(SG), sMB, sJ2K, base + b*1024)
            g(f"s_not_b64 exec, exec")
            for b in range(2): dma(g, q, tag, hM+b, srd(SU), sMB, sJ2K, base + b*1024)
            g("s_mov_b64 exec, -1")
            return
        vo, sr, so, off = [(hG, SG, sGB, 0), (hG, SU, sGB, 0), (hG, SG, sGB, 128), (hG, SU, sGB, 128)][p]
    for b in range(2):
        if off and b == 0:
            dma(g, q, tag, vo+b, srd(sr), sSO, sJ2K, base + b*1024, f"s_add_u32 s{sSO}, s{so}, {off}")
        else:
            dma(g, q, tag, vo+b, srd(sr), sSO if off else so, sJ2K, base + b*1024)


def h_group(g, q, typ, s, grp):
    par = s & 1
    tag = f"G{grp}({s})"
    if grp == 1:
        h_slabbase(g, typ, s)
        for b in range(4): dma(g, q, tag, hX+b, srd(SX), sXB, sJ4K, XR[par] + b*1024)
        if typ == "A":
            g("s_mov_b32 exec_hi, 0")
            dma(g, q, tag, hXH, srd(SX), sMB, sJH, HALO[par])
            g("s_mov_b64 exec, -1")
        for p in (0, 1): h_panel(g, q, tag, typ, par, p)
    else:
        for p in (2, 3, 4): h_panel(g, q, tag, typ, par, p)


def h_w2dma(g, q, tag, i, m0base, m0const, delta=0):
    for b in range(4):
        g(f"s_add_u32 m0, s{m0base}, {m0const + b*1024}")
        g(f"s_add_u32 s{sSO}, s{sKB+i}, {(b*8192 + delta) & 0xffffffff}")
        g(f"buffer_load_dwordx4 v{hW2}, {w2srd(i)}, s{sSO} offen lds")
        q.op(tag)


def h_setup2(g, typ):
    g(f"v_mov_b32 v{hLANE}, v0")
    g("v_lshrrev_b32 v1, 3, v0\nv_and_b32 v2, 7, v0\nv_bfe_u32 v3, v1, 1, 2\nv_lshlrev_b32 v3, 1, v3\nv_xor_b32 v3, v3, v2")
    g(f"v_lshlrev_b32 v1, 10, v1\nv_lshl_add_u32 v{hW2}, v3, 4, v1")
    w2_pattern(g, hA2, hLANE, sSTG, 1)
    kappa_offsets(g)
    g("v_lshrrev_b32 v4, 4, v0\nv_bfe_u32 v5, v0, 2, 2\nv_and_b32 v6, 3, v0")
    g("v_lshl_add_u32 v7, v4, 3, v5\nv_lshlrev_b32 v7, 7, v7\nv_lshl_add_u32 v7, v6, 3, v7")
    g("v_lshrrev_b32 v8, 1, v5\nv_and_b32 v9, 1, v4\nv_lshl_add_u32 v8, v9, 1, v8")
    cols_panel(g, sT0)
    g(f"s_lshl_b32 s{sT0}, s{sT0}, 13")
    for n in range(4):
        g(f"v_xor_b32 v9, {n}, v8\nv_lshl_add_u32 v9, v9, 5, v7\nv_add_u32 v{hCA+n}, s{sT0}, v9")
    if typ == "A":
        g(f"v_xor_b32 v9, s{sJ}, v8\nv_lshl_add_u32 v{hHW}, v9, 5, v7\nv_add_u32 v{hHW+1}, {WR[1]}, v{hHW}")
        g("v_and_b32 v5, 15, v0\nv_lshrrev_b32 v6, 1, v5\nv_xor_b32 v6, v6, v4")
        g(f"v_lshlrev_b32 v7, 7, v5\nv_add_u32 v7, {HALO[0]}, v7")
        g(f"v_lshl_add_u32 v{hHX}, v6, 4, v7\nv_xor_b32 v6, 4, v6\nv_lshl_add_u32 v{hHX+1}, v6, 4, v7")
        for r in range(8): g(f"v_mov_b32 v{r}, 0")
    g(f"s_and_b32 s{sT0}, s{sROT}, 1\ns_lshl_b32 s{sT0}, s{sT0}, 13\ns_lshr_b32 s{sT1}, s{sCS}, 3\ns_lshl_b32 s{sT1}, s{sT1}, 12")
    g(f"s_add_u32 s{sT0}, s{sT0}, s{sT1}\ns_add_u32 s{sT0}, s{sT0}, {XR[0]}")
    g(f"v_and_b32 v10, 31, v{hLANE}\nv_lshrrev_b32 v11, 5, v{hLANE}\nv_lshl_add_u32 v10, v10, 7, s{sT0}\nv_lshl_add_u32 v{hSA}, v11, 6, v10")
    for r in range(234, 250): g(f"v_mov_b32 v{r}, 0")
    for r in range(250, 254): g(f"v_mov_b32 v{r}, 0x3f803f80")


def h_halo_reads(g, par):
    for pn in range(2):
        for j in range(2):
            for h in range(2):
                g(f"ds_read_b64_tr_b16 {v(8+pn*8+j*4+h*2,2)}, v{hHW+par} offset:{pn*8192 + j*4096 + h*512}")
    for j in range(2):
        g(f"ds_read_b128 {v(24+j*4,4)}, v{hHX+j} offset:{par*2048}")

def h_halo_mfma(g):
    g("s_waitcnt lgkmcnt(0)")
    for j in range(2): mfma(g, 0, 8+j*4, 24+j*4)
    for j in range(2): mfma(g, 4, 24+j*4, 16+j*4)


def h_colsum(g, s, lab, cond):
    if cond == "w1":
        g(f"s_cmp_lg_u32 s{sCLS}, 0\ns_cbranch_scc1 {lab}\ns_cmp_ge_u32 s{sJ}, 2\ns_cbranch_scc1 {lab}")
    else:
        g(f"s_cmp_eq_u32 s{sCLS}, 0\ns_cbranch_scc1 {lab}\ns_cmp_lg_u32 s{sJ}, 0\ns_cbranch_scc1 {lab}")
    for n in range(4):
        for j in range(2):
            for h in range(2):
                g(f"ds_read_b64_tr_b16 {v(32+n*8+j*4+h*2,2)}, v{hCA+n} offset:{WR[s&1] + j*4096 + h*512}")
    g("s_waitcnt lgkmcnt(0)")
    for n in range(4):
        for j in range(2): mfma(g, 234+n*4, 32+n*8+j*4, 250)
    if s == 1:
        cols_slot(g, sT2)
        g(f"v_lshrrev_b32 v32, 4, v{hLANE}\nv_lshlrev_b32 v32, 4, v32")
        g("s_mov_b32 exec_lo, 0x00010001\ns_mov_b32 exec_hi, 0x00010001\ns_nop 3")
        for n in range(4):
            g(f"buffer_store_dwordx4 {v(234+n*4,4)}, v32, {srd(SW)}, s{sT2} offen offset:{n*64} sc1")
        g("s_mov_b64 exec, -1")
    g.lab(lab)


def h_stats(g, s, lab):
    g(f"s_cmp_lg_u32 s{sJ}, 2\ns_cbranch_scc1 {lab}")
    for qq in range(4):
        g(f"ds_read_b128 {v(32+qq*4,4)}, v{hSA} offset:{(s&1)*16384 + qq*16}")
    g("s_waitcnt lgkmcnt(0)")
    for d in range(16):
        g(f"v_lshlrev_b32 v48, 16, v{32+d}\nv_and_b32 v49, 0xffff0000, v{32+d}")
        g("v_add_f32 v234, v234, v48\nv_add_f32 v235, v235, v49\nv_fmac_f32 v236, v48, v48\nv_fmac_f32 v237, v49, v49")
    if s == 1:
        g("v_add_f32 v234, v234, v235\nv_add_f32 v235, v236, v237")
        stats_slot(g, sT2)
        g("v_mov_b32 v236, v234\nv_mov_b32 v237, v235\ns_nop 1")
        g("v_permlane32_swap_b32 v234, v236\nv_permlane32_swap_b32 v235, v237")
        g(f"v_add_f32 v234, v234, v236\nv_add_f32 v235, v235, v237\nv_lshlrev_b32 v32, 3, v{hLANE}")
        g("s_mov_b32 exec_hi, 0")
        g(f"buffer_store_dwordx2 v[234:235], v32, {srd(SW)}, s{sT2} offen sc1")
        g("s_mov_b64 exec, -1")
    g.lab(lab)


def spin(g, lab, sleep):
    if sleep: g(f"s_sleep {sleep}")
    g(f"s_add_u32 s{sLOOP}, s{sLOOP}, 1\ns_cmp_lt_u32 s{sLOOP}, 0x40000\ns_cbranch_scc1 {lab}")


def h_count_issue(g, typ):
    lab = f"L_h{typ}_ci"
    g(f"v_and_b32 v60, 1, v{hLANE}\nv_lshlrev_b32 v60, 7, v60")
    g(f"s_cmp_lg_u32 s{sJ}, 3\ns_cbranch_scc1 {lab}")
    g(f"buffer_load_dword v61, v60, {srd(SDBG)}, 0 offen sc1")
    g.lab(lab)


def h_count_check(g, typ, n_younger):
    lab = f"L_h{typ}_cnt"
    g(f"s_cmp_lg_u32 s{sJ}, 3\ns_cbranch_scc1 {lab}_done\ns_mov_b32 s{sLOOP}, 0")
    g(f"s_waitcnt vmcnt({n_younger})")
    g.lab(lab)
    g(f"v_cmp_ne_u32 vcc, 128, v61\ns_nop 3\ns_cmp_eq_u64 vcc, 0\ns_cbranch_scc1 {lab}_done")
    g(f"s_sleep 4\nbuffer_load_dword v61, v60, {srd(SDBG)}, 0 offen sc1\ns_waitcnt vmcnt(0)")
    spin(g, lab, 0)
    g.lab(lab + "_done")


def gather_loads(g, typ, who):
    if who == "cols":
        for j in range(4):
            g(f"buffer_load_dwordx4 {v(32+j*4,4)}, v58, {srd(SW)}, s{sHB} offen offset:{j*1280} sc1")
            g(f"buffer_load_dword v{48+j}, v59, {srd(SW)}, s{sHB} offen offset:{j*1280} sc1")
    else:
        for j in range(4):
            g(f"buffer_load_dwordx4 {v(32+j*4,4)}, v58, {srd(SW)}, s{sHB} offen offset:{j*1024} sc1")


def h_gather_issue(g, typ):
    P = f"L_h{typ}_gi"
    g(f"v_lshlrev_b32 v58, 4, v{hLANE}\nv_lshlrev_b32 v59, 2, v{hLANE}\nv_add_u32 v59, 1024, v59")
    g(f"s_cmp_eq_u32 s{sJ}, 0\ns_cbranch_scc1 {P}_done")
    g(f"s_cmp_eq_u32 s{sJ}, 3\ns_cbranch_scc1 {P}_c")
    g(f"s_sub_u32 s{sT0}, 2, s{sJ}\ns_sub_u32 s{sT0}, s{sRB}, s{sT0}\ns_max_i32 s{sT0}, s{sT0}, 0")
    g(f"s_lshl_b32 s{sHB}, s{sT0}, 12\ns_add_u32 s{sHB}, s{sHB}, {STATS}")
    gather_loads(g, typ, "stats")
    g(f"s_branch {P}_done")
    g.lab(P + "_c")
    g(f"s_lshl_b32 s{sHB}, s{sCS}, 13\ns_add_u32 s{sHB}, s{sHB}, {COLS}")
    gather_loads(g, typ, "cols")
    g.lab(P + "_done")


def h_gather_finish(g, typ, n_younger):
    P = f"L_h{typ}_gf"
    g(f"s_mov_b32 s{sLOOP}, 0")
    g(f"s_cmp_eq_u32 s{sJ}, 0\ns_cbranch_scc1 {P}_done")
    g(f"s_cmp_eq_u32 s{sJ}, 3\ns_cbranch_scc1 {P}_c")
    g(f"s_waitcnt vmcnt({n_younger})")
    g.lab(P + "_s")
    g("v_max3_u32 v52, v32, v33, v34")
    for k in range(35, 48, 2):
        if k < 47: g(f"v_max3_u32 v52, v52, v{k}, v{k+1}")
        else: g(f"v_max_u32 v52, v52, v{k}")
    g(f"v_cmp_eq_u32 vcc, -1, v52\ns_nop 3\ns_cmp_eq_u64 vcc, 0\ns_cbranch_scc1 {P}_sok")
    g("s_sleep 2")
    gather_loads(g, typ, "stats")
    g("s_waitcnt vmcnt(0)")
    spin(g, P + "_s", 0)
    g.lab(P + "_sok")
    for k in range(4):
        g(f"v_add_f32 v{32+k}, v{32+k}, v{36+k}\nv_add_f32 v{40+k}, v{40+k}, v{44+k}")
    for k in range(4): g(f"v_add_f32 v{32+k}, v{32+k}, v{40+k}")
    g("v_mul_f32 v36, 0x3b000000, v32\nv_mul_f32 v37, 0x3b000000, v34")
    g("v_mul_f32 v38, 0x3b000000, v33\nv_mul_f32 v39, 0x3b000000, v35")
    g("v_fma_f32 v38, -v36, v36, v38\nv_fma_f32 v39, -v37, v37, v39")
    g("v_max_f32 v38, 0, v38\nv_max_f32 v39, 0, v39")
    g("v_add_f32 v38, 0x3727c5ac, v38\nv_add_f32 v39, 0x3727c5ac, v39")
    g("v_rsq_f32 v38, v38\nv_rsq_f32 v39, v39")
    g(f"v_lshlrev_b32 v40, 3, v{hLANE}\nv_add_u32 v40, {MEAN}, v40")
    g(f"s_cmp_eq_u32 s{sJ}, 2\ns_cbranch_scc1 {P}_sw")
    g(f"v_and_b32 v40, 3, v{hLANE}\nv_bfe_u32 v41, v{hLANE}, 3, 1\nv_lshl_add_u32 v40, v41, 2, v40\nv_lshlrev_b32 v40, 3, v40\nv_add_u32 v40, {MEAN+512}, v40")
    g("s_mov_b32 exec_lo, 0\ns_mov_b32 exec_hi, 0xf0f00000")
    g.lab(P + "_sw")
    g(f"ds_write_b64 v40, v[36:37]\nds_write_b64 v40, v[38:39] offset:{RSTD-MEAN}")
    g(f"s_mov_b64 exec, -1\ns_branch {P}_done")
    g.lab(P + "_c")
    g(f"s_waitcnt vmcnt({n_younger})")
    g.lab(P + "_cc")
    g("v_max3_u32 v52, v32, v33, v34")
    for k in range(35, 51, 2): g(f"v_max3_u32 v52, v52, v{k}, v{k+1}")
    g("v_max_u32 v52, v52, v51")
    g(f"v_cmp_eq_u32 vcc, -1, v52\ns_nop 3\ns_cmp_eq_u64 vcc, 0\ns_cbranch_scc1 {P}_cok")
    g("s_sleep 2")
    gather_loads(g, typ, "cols")
    g("s_waitcnt vmcnt(0)")
    spin(g, P + "_cc", 0)
    g.lab(P + "_cok")
    for k in range(4):
        g(f"v_add_f32 v{32+k}, v{32+k}, v{36+k}\nv_add_f32 v{40+k}, v{40+k}, v{44+k}")
    g("v_add_f32 v48, v48, v49\nv_add_f32 v50, v50, v51")
    for k in range(4): g(f"v_add_f32 v{32+k}, v{32+k}, v{40+k}")
    g(f"v_add_f32 v48, v48, v50\nv_add_u32 v58, {CSUM}, v58\nv_add_u32 v59, {CSUM}, v59")
    g("ds_write_b128 v58, v[32:35]\nds_write_b32 v59, v48")
    g.lab(P + "_done")


def h_halo_finish(g):
    g(f"v_and_b32 v32, 15, v{hLANE}\nv_lshrrev_b32 v33, 4, v{hLANE}")
    g(f"s_lshl_b32 s{sT0}, s{sJ}, 6\ns_add_u32 s{sT0}, s{sT0}, {CSUM}")
    g(f"v_lshlrev_b32 v34, 2, v32\nv_lshlrev_b32 v35, 4, v33")
    g(f"v_add_u32 v36, {MEAN+512}, v34\nv_add_u32 v37, {MEAN+512}, v35\nv_add_u32 v38, s{sT0}, v35\nv_add_u32 v39, s{sT0}, v34")
    g(f"ds_read2_b32 v[40:41], v36 offset0:0 offset1:{(RSTD-MEAN)//4}")
    g(f"ds_read_b128 v[44:47], v38\nds_read_b32 v42, v39 offset:256")
    g(f"ds_read_b128 v[48:51], v37\nds_read_b128 v[52:55], v37 offset:{RSTD-MEAN}")
    g(f"s_lshl_b32 s{sT0}, s{sJ}, 10\ns_add_u32 s{sT0}, s{sT0}, {EX}")
    g(f"v_and_b32 v56, 7, v32\nv_lshl_add_u32 v56, v33, 3, v56\nv_lshlrev_b32 v56, 3, v56\nv_lshrrev_b32 v57, 3, v32\nv_lshl_add_u32 v56, v57, 9, v56\nv_add_u32 v56, s{sT0}, v56")
    g(f"v_and_b32 v57, 1, v33\nv_lshl_add_u32 v57, v57, 4, v32\nv_lshlrev_b32 v57, 3, v57\nv_lshrrev_b32 v58, 1, v33\nv_lshl_add_u32 v57, v58, 9, v57\nv_add_u32 v57, s{sT0}, v57")
    g("s_waitcnt lgkmcnt(0)")
    pkfma_negb(g, 0, 44, 40); pkfma_negb(g, 2, 46, 40)
    pkfma_negb(g, 4, 48, 42); pkfma_negb(g, 6, 50, 42)
    pkmul_b(g, 0, 40, 1); pkmul_b(g, 2, 40, 1)
    pkmul(g, 4, 52); pkmul(g, 6, 54)
    cvt(g, 0, 0); cvt(g, 1, 2); cvt(g, 4, 4); cvt(g, 5, 6)
    g("ds_write_b64 v56, v[0:1]\nds_write_b64 v57, v[4:5] offset:256")


def h_start(g, typ):
    q = HQ(g)
    h_setup(g, typ)
    h_group(g, q, typ, 0, 1); h_group(g, q, typ, 0, 2)
    return q


SLOTS = {"S0": (sSTG, 0), "S1": (sSTG, 4096), "R0": (sJ4K, WR[0]), "R1": (sJ4K, XR[0]), "R2": (sJ4K, WR[0]+16384),
         "R3": (sJ4K, WR[1]), "R4": (sJ4K, XR[1]), "R5": (sJ4K, WR[1]+16384), "R6": (sN6, 0)}
CSLOT = ["R0", "R1", "R2", "R3", "R4", "R5", "R6", "S0", "S1"]
SCHED = {
    2: [("H", 0, "S0")], 4: [("H", 1, "S1")], 6: [("r", 0), ("H", 2, "S0")], 8: [("r", 1), ("H", 3, "S1")],
    10: [("r", 2), ("H", 4, "S0")],
    12: [("r", 3), ("H", 5, "S1"), ("H", 6, "R0"), ("H", 7, "R1")],
    13: [("r", 4), ("H", 8, "S0"), ("C", 2)],
    14: [("C", 3), ("C", 4)],
    15: [("C", 5), ("C", 6), ("r", 5), ("r", 6), ("r", 7), ("r", 8), ("BS",), ("C", 0), ("C", 1), ("C", 8), ("C", 7)],
}


def h_main(g, typ, q):
    o = g.o
    h_setup2(g, typ)
    sched = o.get("sched", SCHED)
    DB, DA = -20*32768, -8*32768
    g.hstamp("pre")
    g(f"s_waitcnt vmcnt({q.younger(['G1(0)'])})")
    g.hstamp("w-2")
    g("s_barrier")
    g.hstamp(-2)
    gm = cm = None
    where = {}
    for seg in range(-1, 16):
        s = seg // 2
        after_b1 = (seg % 2 == 1)
        g.c(f"--- H seg {seg}")
        if after_b1:
            sn = s + 1
            if typ == "A" and sn < 8: h_halo_reads(g, sn & 1)
            if seg == -1: h_group(g, q, typ, 1, 1)
            if seg == o.get("gseg", 11):
                h_gather_issue(g, typ); gm = q.mark()
            if s >= 0 and s + 2 < 8: h_group(g, q, typ, s+2, 2)
            if typ == "A" and sn < 8: h_halo_mfma(g)
            if sn < 2:
                h_colsum(g, sn, f"L_h{typ}_cs1_{sn}", "w1")
                h_stats(g, sn, f"L_h{typ}_st_{sn}")
        else:
            if seg == 0: h_group(g, q, typ, 1, 2)
            if seg == 8: h_count_issue(g, typ); cm = q.mark()
            if s + 2 < 8: h_group(g, q, typ, s+2, 1)
            if s < 2: h_colsum(g, s, f"L_h{typ}_cs2_{s}", "w2")
            if seg == 10: h_count_check(g, typ, q.since(cm))
            if seg == 14 and typ == "A": h_halo_finish(g)
        pend = False
        for ev in sched.get(seg, []):
            if ev[0] == "r":
                i = ev[1]; sl = where[i]
                g(f"s_waitcnt vmcnt({q.younger([f'W2({i})'])})")
                if sl[0] == "S": areg, off = hA2, SLOTS[sl][1]
                else:
                    areg, off = 244, 0
                    if pend: g("s_waitcnt lgkmcnt(0)")
                    g(f"s_sub_u32 s{sT0}, s{SLOTS[sl][0]}, s{sSTG}\ns_add_u32 s{sT0}, s{sT0}, {SLOTS[sl][1]}")
                    for n in range(4): g(f"v_add_u32 v{244+n}, s{sT0}, v{hA2+n}")
                for l in w2_reads(i, areg, off): g(l)
                pend = True
            else:
                if pend: g("s_waitcnt lgkmcnt(0)"); pend = False
                if ev[0] == "BS":
                    if typ == "B" and o.get("bs", 1): g("s_barrier")
                elif ev[0] == "H":
                    where[ev[1]] = ev[2]
                    h_w2dma(g, q, f"W2({ev[1]})", ev[1], *SLOTS[ev[2]])
                else:
                    h_w2dma(g, q, "CW", ev[1], *SLOTS[CSLOT[ev[1]]], DB if ev[1] < 5 else DA)
        if seg == o.get("gseg", 11) + 1: h_gather_finish(g, typ, q.since(gm))
        if seg == 15: break
        if after_b1: need = f"G2({s+1})"
        else: need = f"G1({s+1})"
        g.hstamp(f"i{seg}")
        if need in q.q: g(f"s_waitcnt vmcnt({q.younger([need])}) lgkmcnt(0)")
        else: g("s_waitcnt lgkmcnt(0)")
        g.hstamp(f"w{seg}")
        g("s_barrier")
        g.hstamp(seg)
    g.hstamp("i15")
    if typ == "A": g("s_barrier")
    g(f"v_mov_b32 v253, v{hLANE}")
    g("s_waitcnt vmcnt(0) lgkmcnt(0)")
    g.hstamp("w15")
    g("s_barrier")
    g.hstamp("BW")
    g("s_setprio 0")
    g("s_barrier")
    g("s_branch L_P2")


def poll(g, lab, sa):
    g(f"s_mov_b32 s{sLOOP}, 0")
    g.lab(lab)
    g(f"s_load_dwordx2 s[{sP0}:{sP0+1}], s[{sFL}:{sFL+1}], {sa} glc")
    g("s_waitcnt lgkmcnt(0)")
    g(f"s_and_b32 s{sP0}, s{sP0}, s{sP0+1}\ns_cmp_eq_u32 s{sP0}, 1\ns_cbranch_scc1 {lab}_ok")
    spin(g, lab, 1)
    g.lab(lab + "_ok")


def phase2(g):
    g.lab("L_P2")
    g.stamp(4)
    g(f"s_lshr_b32 s{sT0}, s{sRT}, 1\ns_lshl_b32 s{sT0}, s{sT0}, 4\ns_add_u32 s{sT0}, s{sT0}, s{sWAVE}\ns_lshl_b32 s{sT0}, s{sT0}, 7")
    g(f"s_and_b32 s{sT1}, s{sRT}, 1\ns_lshl_b32 s{sT1}, s{sT1}, 3\ns_add_u32 s{sT0}, s{sT0}, s{sT1}\ns_add_u32 s{sT0}, s{sT0}, {FLAGS}")
    g(f"s_add_u32 s{sFL}, s{SW}, s{sT0}\ns_addc_u32 s{sFL+1}, s{SW+1}, 0")
    g(f"s_mul_i32 s{sHB}, s{sRT}, {72*4096}")
    for i in range(9):
        g(f"s_lshr_b32 s{sKB+i}, s{sKB+i}, 15\ns_lshl_b32 s{sKB+i}, s{sKB+i}, 12\ns_add_u32 s{sKB+i}, s{sKB+i}, s{sHB}")
        if i >= 7: g(f"s_add_u32 s{sKB+i}, s{sKB+i}, {56*4096}")
    g(f"v_lshlrev_b32 v{vHO}, 4, v253")
    poll(g, "L_pollB", 1024)
    g.stamp(5)
    order = []
    for grp in ((0, 1), (2, 3), (4,), (5, 6), (7, 8)):
        for t in range(4):
            for i in grp: order.append((i, t))
    steps = []
    n = 0
    for grp in ((0, 1), (2, 3), (4,), (5, 6), (7, 8)):
        for t in range(4):
            steps.append((grp, t, n)); n += len(grp)
    issued = 0
    def issue():
        nonlocal issued
        i, t = order[issued]
        if issued == 20:
            poll(g, "L_pollA", 0)
            g.stamp(6)
        g(f"buffer_load_dwordx4 {v(HS+4*(issued % NHS),4)}, v{vHO}, {srd(SW)}, s{sKB+i} offen offset:{t*1024} sc1")
        issued += 1
    for _ in range(NHS): issue()
    for (grp, t, n0) in steps:
        last = n0 + len(grp) - 1
        g(f"s_waitcnt vmcnt({issued - 1 - last})")
        for nn in range(4):
            for k, i in enumerate(grp):
                d = (nn*4+t)*4
                a = W2F + (i*4+nn)*4
                b = HS + 4*((n0+k) % NHS)
                if i == 0: mfma0(g, d, a, b)
                else: mfma(g, d, a, b)
        for _ in grp:
            if issued < 36: issue()
    g.stamp(7)
    g("v_and_b32 v64, 15, v253\nv_lshrrev_b32 v65, 4, v253\nv_and_b32 v66, 7, v253")
    g(f"s_lshl_b32 s{sT0}, s{sWAVE}, 14")
    g(f"v_lshl_add_u32 v67, v64, 8, s{sT0}\nv_xor_b32 v68, v65, v66")
    g("v_lshl_add_u32 v69, v68, 4, v67\nv_xor_b32 v68, 4, v68\nv_lshl_add_u32 v70, v68, 4, v67")
    g(f"v_lshrrev_b32 v71, 3, v253\ns_lshl_b32 s{sT1}, s{sWAVE}, 3\nv_add_u32 v72, s{sT1}, v71")
    g("v_and_b32 v73, 15, v72\nv_bfe_u32 v74, v72, 4, 1\nv_lshl_add_u32 v73, v73, 1, v74\nv_and_b32 v74, 32, v72\nv_add_u32 v73, v73, v74")
    g("v_lshlrev_b32 v73, 10, v73\nv_lshl_add_u32 v73, v66, 4, v73")
    g(f"s_lshl_b32 s{sT2}, s{sRT}, 16\ns_lshl_b32 s{sT3}, s{sCT}, 7\ns_add_u32 s{sT2}, s{sT2}, s{sT3}")
    g(f"buffer_load_dwordx4 v[76:79], v73, {srd(SX)}, s{sT2} offen")
    for t in range(4):
        for nn in range(4):
            g(f"ds_write_b128 v{69 + (nn & 1)}, {v((nn*4+t)*4,4)} offset:{t*4096 + (nn >> 1)*128}")
    g("v_lshlrev_b32 v74, 1, v66\nv_and_b32 v75, 7, v71\nv_xor_b32 v74, v74, v75")
    g("v_lshlrev_b32 v80, 8, v72\nv_lshl_add_u32 v81, v74, 4, v80\nv_xor_b32 v74, 1, v74\nv_lshl_add_u32 v82, v74, 4, v80")
    g("v_add_u32 v83, 0x10000, v81\nv_add_u32 v84, 0x10000, v82")
    g("s_waitcnt lgkmcnt(0)")
    g.hstamp("r1")
    g("s_barrier")
    g.hstamp("r2")
    for p in range(8):
        for e in range(2):
            g(f"ds_read_b128 {v(96+p*8+e*4,4)}, v{81 + e + 2*(p >> 2)} offset:{(p & 3)*16384}")
    g("s_waitcnt vmcnt(0)")
    for k in range(4):
        g(f"v_lshlrev_b32 v{160+2*k}, 16, v{76+k}\nv_and_b32 v{161+2*k}, 0xffff0000, v{76+k}")
    for p in range(8):
        g(f"s_waitcnt lgkmcnt({14-2*p})")
        for k in range(4):
            g(f"v_pk_add_f32 {v(160+2*k,2)}, {v(160+2*k,2)}, {v(96+p*8+2*k,2)}")
    for k in range(4): cvt(g, 168+k, 160+2*k)
    g(f"buffer_store_dwordx4 v[168:171], v73, {srd(SOUT)}, s{sT2} offen")
    if g.stamps:
        g.stamp(8)
        sw = g.o.get("stampwave", 0)
        tins = "s_memtime" if g.o.get("cyc") else "s_memrealtime"
        g(f"s_waitcnt vmcnt(0)\n{tins} s[22:23]\ns_waitcnt lgkmcnt(0)\ns_cmp_lg_u32 s{sWAVE}, {sw}\ns_cbranch_scc1 L_end")
        g(f"s_and_b32 s{sT0}, s{sRT}, 3\ns_lshl_b32 s{sT1}, s{sCT}, 2\ns_add_u32 s{sT0}, s{sT0}, s{sT1}\ns_lshl_b32 s{sT0}, s{sT0}, 3\ns_lshr_b32 s{sT1}, s{sRT}, 2\ns_add_u32 s{sT0}, s{sT0}, s{sT1}")
        g(f"s_lshl_b32 s{sT0}, s{sT0}, 8\ns_add_u32 s{sT0}, s{sT0}, {STAMP}\nv_mov_b32 v1, 0")
        for k in range(10):
            g(f"v_mov_b32 v2, s{4+2*k}\nv_mov_b32 v3, s{5+2*k}\nbuffer_store_dwordx2 v[2:3], v1, {srd(SW)}, s{sT0} offen offset:{8*k}\ns_nop 1")
    g.lab("L_end")
    g("s_endpgm")


HEAD = """; Kernarg layout for this problem (80 bytes, ptrs only, base s[0:1]):
; @launch grid=(256,1,1) block=(512,1,1) lds=163840
.amdgcn_target "amdgcn-amd-amdhsa--gfx950"
.text
.globl {k}
.p2align 8
.type {k},@function
{k}:
"""
TAIL = """.section .rodata,"a"
.p2align 6
.amdhsa_kernel {k}
  .amdhsa_next_free_vgpr 256
  .amdhsa_next_free_sgpr 102
  .amdhsa_accum_offset 256
  .amdhsa_group_segment_fixed_size 0
  .amdhsa_kernarg_size 80
  .amdhsa_user_sgpr_count 2
  .amdhsa_user_sgpr_kernarg_segment_ptr 1
  .amdhsa_system_sgpr_workgroup_id_x 1
  .amdhsa_float_denorm_mode_32 3
.end_amdhsa_kernel
"""


def build(stamps=False, opts=None):
    g = G(stamps, opts)
    prologue(g)
    g(f"s_cmp_lt_u32 s{sCS}, 8\ns_cbranch_scc1 L_HA")
    qb = h_start(g, "B")
    g("s_branch L_HB")
    g.lab("L_HA")
    qa = h_start(g, "A")
    h_main(g, "A", qa)
    g.lab("L_HB")
    h_main(g, "B", qb)
    g.lab("L_C")
    c_setup(g)
    g(f"s_cmp_ge_u32 s{sCS}, 8\ns_cbranch_scc1 L_CB")
    c_kloop(g, "A")
    c_epi_A(g)
    g("s_branch L_CW")
    g.lab("L_CB")
    c_kloop(g, "B")
    c_epi_B(g)
    g.lab("L_CW")
    c_w2(g)
    phase2(g)
    pad = "    .fill 7680, 4, 0xBF800000\n"
    return HEAD.format(k=KNAME) + g.text() + pad + TAIL.format(k=KNAME)


if __name__ == "__main__":
    ap = argparse.ArgumentParser()
    ap.add_argument("-o", default="parallel_sum__sliding_local_dilated__glu_gated_reglu__prompt.s")
    ap.add_argument("--stamps", action="store_true")
    ap.add_argument("--opt", action="append", default=[])
    a = ap.parse_args()
    opts = {}
    for kv in a.opt:
        k_, val = kv.split("=", 1)
        opts[k_] = eval(val)
    txt = build(a.stamps, opts)
    open(a.o, "w").write(txt)
    import hazard
    for e in hazard.check(txt): print("HAZARD", e)
```

```python
import sys, argparse

KNAME = "parallel_sum__sliding_local_dilated__glu_gated_reglu__prompt_kernel"

WR = [0, 40960]
XR = [81920, 98304]
HALO = [114688, 116736]
STG = 118784
CSUM = 151552
MEAN = 152832
RSTD = 153408
EX = 153984
LDS_BYTES = 163840
FLAGS = 16 << 20
STATS = FLAGS + (64 << 10)
COLS = FLAGS + (128 << 10)
STAMP = 200 << 20

SX, SQ, SG, SU, SD, SO, SW, SOUT, SDBG = 24, 28, 32, 36, 40, 44, 48, 52, 56
def srd(n): return f"s[{n}:{n+3}]"
sWAVE, sRB, sCS, sROT, sRT, sCT, sJ, sT0, sT1, sT2, sT3 = 60, 61, 62, 63, 64, 65, 66, 67, 68, 69, 70
sXB, sQB, sGB, sMB, sHB = 71, 72, 73, 74, 75
sX0, sQ0, sG0, sM0 = 76, 77, 78, 79
sJ2K, sJ4K, sJH, sSTG, sN6, sSO = 80, 81, 82, 83, 84, 85
sMASK = 86
sKB = 88
sCLS, sLOOP, sRR = 97, 98, 99
sFL = 100
sP0 = 2


class G:
    def __init__(self, stamps=False, opts=None):
        self.L = []
        self.stamps = stamps
        self.o = opts or {}

    def __call__(self, s):
        for l in s.split("\n"):
            l = l.strip()
            if l: self.L.append("    " + l)

    def lab(self, n): self.L.append(n + ":")
    def c(self, s): self.L.append("    ; " + s)
    def align(self, n=3): self.L.append(f"    .p2align {n}")
    def text(self): return "\n".join(self.L) + "\n"
    def stamp(self, k):
        self.hstamp(f"c{k}")
    def hstamp(self, key):
        if not self.stamps: return
        lst = self.o.get("hst", [f"c{k}" for k in range(1, 9)])
        ins = "s_memtime" if self.o.get("cyc") else "s_memrealtime"
        if key == "c0": self(f"{ins} s[4:5]")
        elif key in lst:
            k = 1 + lst.index(key)
            assert k <= 8
            self(f"{ins} s[{4+2*k}:{5+2*k}]")


def v(n, w=1): return f"v{n}" if w == 1 else f"v[{n}:{n+w-1}]"
def mfma(g, d, a, b): g(f"v_mfma_f32_16x16x32_bf16 {v(d,4)}, {v(a,4)}, {v(b,4)}, {v(d,4)}")
def mfma0(g, d, a, b): g(f"v_mfma_f32_16x16x32_bf16 {v(d,4)}, {v(a,4)}, {v(b,4)}, 0")
def mfma16(g, d, a, b): g(f"v_mfma_f32_16x16x16_bf16 {v(d,4)}, {v(a,2)}, {v(b,2)}, 0")

def bsel(hi, pos, n):
    lo = [0]*n; h = [1]*n
    lo[pos] = hi; h[pos] = hi
    return f"op_sel:[{','.join(map(str,lo))}] op_sel_hi:[{','.join(map(str,h))}]"
def pkfma_negb(g, d, a, bb, hi=0):
    g(f"v_pk_fma_f32 {v(d,2)}, {v(a,2)}, {v(bb,2)}, {v(d,2)} {bsel(hi,1,3)} neg_lo:[0,1,0] neg_hi:[0,1,0]")
def pkmul_b(g, d, bb, hi=0): g(f"v_pk_mul_f32 {v(d,2)}, {v(d,2)}, {v(bb,2)} {bsel(hi,1,2)}")
def pkmul(g, d, a): g(f"v_pk_mul_f32 {v(d,2)}, {v(d,2)}, {v(a,2)}")
def cvt(g, d, a): g(f"v_cvt_pk_bf16_f32 v{d}, v{a}, v{a+1}")


def prologue(g):
    g("s_cmp_ge_u32 s2, 256\ns_cbranch_scc1 L_end")
    g("s_load_dwordx4 s[4:7], s[0:1], 0")
    g("s_load_dwordx2 s[8:9], s[0:1], 16")
    g("s_load_dwordx8 s[12:19], s[0:1], 32")
    g("s_load_dwordx4 s[20:23], s[0:1], 64")
    g.c("pull the code into L2 (512 lanes x 128 B); result unused")
    g(f"s_getpc_b64 s[{sT1}:{sT2}]\nv_lshlrev_b32 v2, 7, v0")
    g(f"global_load_dword v255, v2, s[{sT1}:{sT2}]")
    g("v_lshrrev_b32 v1, 6, v0\nv_and_b32 v0, 63, v0")
    g(f"s_and_b32 s{sT0}, s2, 7\ns_lshr_b32 s{sT1}, s2, 3")
    g(f"v_readfirstlane_b32 s{sWAVE}, v1")
    g(f"s_and_b32 s{sRB}, s{sT0}, 1\ns_lshl_b32 s{sRB}, s{sRB}, 2\ns_and_b32 s{sT2}, s{sT1}, 3\ns_add_u32 s{sRB}, s{sRB}, s{sT2}")
    g(f"s_and_b32 s{sT3}, s{sT1}, 8\ns_add_u32 s{sRB}, s{sRB}, s{sT3}")
    g(f"s_and_b32 s{sCS}, s{sT0}, 6\ns_bfe_u32 s{sT3}, s{sT1}, 0x10002\ns_add_u32 s{sCS}, s{sCS}, s{sT3}")
    g(f"s_lshr_b32 s{sT3}, s{sT1}, 4\ns_lshl_b32 s{sT3}, s{sT3}, 3\ns_add_u32 s{sCS}, s{sCS}, s{sT3}")
    g(f"s_add_u32 s{sROT}, s{sRB}, s{sCS}\ns_and_b32 s{sROT}, s{sROT}, 7")
    g(f"s_lshl_b32 s{sRT}, s{sT0}, 2\ns_add_u32 s{sRT}, s{sRT}, s{sT2}\ns_lshr_b32 s{sCT}, s{sT1}, 2")
    g(f"s_and_b32 s{sJ}, s{sWAVE}, 3")
    g(f"s_lshl_b32 s{sJ2K}, s{sJ}, 11\ns_lshl_b32 s{sJ4K}, s{sJ}, 12\ns_lshl_b32 s{sJH}, s{sJ}, 9")
    g(f"s_lshl_b32 s{sSTG}, s{sJ}, 13\ns_add_u32 s{sSTG}, s{sSTG}, {STG}")
    g(f"s_add_u32 s{sN6}, s{sJ4K}, {WR[0]+32768}\ns_cmp_ge_u32 s{sJ}, 2\ns_cselect_b32 s{sT3}, {WR[1]-WR[0]-8192}, 0\ns_add_u32 s{sN6}, s{sN6}, s{sT3}")
    g(f"s_and_b32 s{sCLS}, s{sROT}, 1\ns_lshl_b32 s{sCLS}, s{sCLS}, 1\ns_lshr_b32 s{sT3}, s{sRB}, 3\ns_add_u32 s{sCLS}, s{sCLS}, s{sT3}")
    for n, sz in ((SX, 2048*1024), (SQ, 512*3072), (SG, 512*3584), (SU, 512*3584), (SD, 1792*1024), (SO, 512*1024),
                  (SW, 256 << 20), (SOUT, 2048*1024), (SDBG, 256)):
        g(f"s_mov_b32 s{n+2}, {sz}\ns_mov_b32 s{n+3}, 0x20000")
    g("s_waitcnt lgkmcnt(0)")
    for n, p in ((SX, 4), (SQ, 6), (SO, 8), (SG, 12), (SU, 14), (SD, 16), (SOUT, 18), (SDBG, 20), (SW, 22)):
        g(f"s_mov_b32 s{n}, s{p}\ns_mov_b32 s{n+1}, s{p+1}")
    g.stamp(0)
    g(f"s_cmp_lt_u32 s{sWAVE}, 4\ns_cbranch_scc1 L_C")


def kappa_offsets(g):
    g(f"s_add_u32 s{sRR}, s{sRT}, s{sCT}")
    g(f"s_mul_i32 s{sT0}, s{sRR}, 52\ns_lshr_b32 s{sT0}, s{sT0}, 8\ns_mul_i32 s{sT0}, s{sT0}, 5\ns_sub_u32 s{sT0}, s{sRR}, s{sT0}")
    g(f"s_mul_i32 s{sT1}, s{sWAVE}, 5\ns_add_u32 s{sT1}, s{sT1}, 16")
    g(f"s_lshl_b32 s{sT3}, s{sCT}, 7")
    for i in range(5):
        g(f"s_add_u32 s{sT2}, s{sT0}, {i}\ns_cmp_ge_u32 s{sT2}, 5\ns_cselect_b32 s{sKB+i}, 5, 0\ns_sub_u32 s{sT2}, s{sT2}, s{sKB+i}")
        g(f"s_add_u32 s{sT2}, s{sT2}, s{sT1}\ns_lshl_b32 s{sT2}, s{sT2}, 15\ns_add_u32 s{sKB+i}, s{sT2}, s{sT3}")
    g(f"s_and_b32 s{sT0}, s{sRR}, 1\ns_lshl_b32 s{sT1}, s{sWAVE}, 1")
    for i in range(2):
        g(f"s_xor_b32 s{sT2}, s{sT0}, {i}\ns_add_u32 s{sT2}, s{sT2}, s{sT1}\ns_lshl_b32 s{sT2}, s{sT2}, 15\ns_add_u32 s{sKB+5+i}, s{sT2}, s{sT3}")
        g(f"s_mov_b32 s{sKB+7+i}, s{sKB+5+i}")

def w2srd(i): return srd(SD) if i < 7 else srd(SO)


def stats_slot(g, sdst):
    g(f"s_lshl_b32 s{sdst}, s{sRB}, 12\ns_lshr_b32 s{sT3}, s{sROT}, 1\ns_lshl_b32 s{sT3}, s{sT3}, 10\ns_add_u32 s{sdst}, s{sdst}, s{sT3}")
    g(f"s_and_b32 s{sT3}, s{sROT}, 1\ns_lshl_b32 s{sT3}, s{sT3}, 9\ns_add_u32 s{sdst}, s{sdst}, s{sT3}")
    g(f"s_lshr_b32 s{sT3}, s{sCS}, 3\ns_lshl_b32 s{sT3}, s{sT3}, 8\ns_add_u32 s{sdst}, s{sdst}, s{sT3}\ns_add_u32 s{sdst}, s{sdst}, {STATS}")

def cols_panel(g, sdst):
    g(f"s_add_u32 s{sdst}, s{sCLS}, 1\ns_cmp_eq_u32 s{sCLS}, 0\ns_cselect_b32 s{sdst}, s{sJ}, s{sdst}")

def cols_slot(g, sdst):
    cols_panel(g, sdst)
    g(f"s_lshl_b32 s{sdst}, s{sdst}, 8")
    g(f"s_lshr_b32 s{sT3}, s{sROT}, 1\ns_mul_i32 s{sT3}, s{sT3}, 1280\ns_add_u32 s{sdst}, s{sdst}, s{sT3}")
    g(f"s_lshl_b32 s{sT3}, s{sCS}, 13\ns_add_u32 s{sdst}, s{sdst}, s{sT3}\ns_add_u32 s{sdst}, s{sdst}, {COLS}")


ACC, XF, WF = 0, 160, 192
vWA, vXA, vLANE = 224, 228, 230
def accr(p, tl, t): return ACC + ((p*2+tl)*4+t)*4


def c_setup(g):
    g.c("C wave setup")
    g(f"s_cmp_lg_u32 s{sWAVE}, 0\ns_cbranch_scc1 L_c_noclr")
    g("v_mov_b32 v248, -1\nv_mov_b32 v249, -1\nv_mov_b32 v250, 0\nv_lshlrev_b32 v251, 2, v0\nv_lshlrev_b32 v252, 3, v0")
    stats_slot(g, sT2)
    g("s_mov_b32 exec_hi, 0")
    g(f"buffer_store_dwordx2 v[248:249], v252, {srd(SW)}, s{sT2} offen sc1")
    g("s_mov_b64 exec, -1")
    cols_slot(g, sT2)
    g(f"buffer_store_dword v248, v251, {srd(SW)}, s{sT2} offen sc1")
    g(f"s_cmp_lg_u32 s{sCLS}, 0\ns_cbranch_scc1 L_c_clr1")
    g(f"buffer_store_dword v248, v251, {srd(SW)}, s{sT2} offen offset:256 sc1")
    g.lab("L_c_clr1")
    g(f"s_lshl_b32 s{sT2}, s{sRB}, 4\ns_add_u32 s{sT2}, s{sT2}, s{sCS}\ns_lshl_b32 s{sT2}, s{sT2}, 7\ns_add_u32 s{sT2}, s{sT2}, {FLAGS}")
    g("s_mov_b64 exec, 15")
    g(f"buffer_store_dword v250, v251, {srd(SW)}, s{sT2} offen sc1")
    g("s_mov_b64 exec, -1")
    g.lab("L_c_noclr")
    g(f"s_and_b32 s{sT0}, s{sWAVE}, 1\ns_lshl_b32 s{sT0}, s{sT0}, 1")
    g(f"s_lshr_b32 s{sT1}, s{sWAVE}, 1\ns_lshl_b32 s{sT1}, s{sT1}, 13\ns_add_u32 s{sT1}, s{sT1}, {XR[0]}")
    g("v_lshrrev_b32 v4, 4, v0\nv_bfe_u32 v5, v0, 2, 2\nv_and_b32 v6, 3, v0")
    g("v_lshl_add_u32 v7, v4, 3, v5\nv_lshlrev_b32 v7, 7, v7\nv_lshl_add_u32 v7, v6, 3, v7")
    g("v_lshrrev_b32 v14, 1, v5\nv_and_b32 v15, 1, v4\nv_lshl_add_u32 v14, v15, 1, v14")
    g(f"v_xor_b32 v14, s{sT0}, v14")
    g(f"v_lshl_add_u32 v{vWA}, v14, 5, v7\nv_xor_b32 v14, 1, v14\nv_lshl_add_u32 v{vWA+1}, v14, 5, v7")
    g(f"v_add_u32 v{vWA+2}, {WR[1]}, v{vWA}\nv_add_u32 v{vWA+3}, {WR[1]}, v{vWA+1}")
    g("v_and_b32 v5, 15, v0\nv_lshrrev_b32 v6, 1, v5\nv_xor_b32 v6, v6, v4")
    g(f"v_lshl_add_u32 v7, v5, 7, s{sT1}")
    g(f"v_lshl_add_u32 v{vXA}, v6, 4, v7\nv_xor_b32 v6, 4, v6\nv_lshl_add_u32 v{vXA+1}, v6, 4, v7")
    g(f"v_mov_b32 v{vLANE}, v0")
    kappa_offsets(g)
    for r in range(ACC, ACC+160): g(f"v_mov_b32 v{r}, 0")
    g(f"s_cmp_lg_u32 s{sWAVE}, 0\ns_cbranch_scc1 L_c_nocnt")
    g(f"v_mov_b32 v253, 1\nv_mov_b32 v250, 0\ns_and_b32 s{sT2}, s2, 1\ns_lshl_b32 s{sT2}, s{sT2}, 7")
    g("s_mov_b64 exec, 1")
    g("s_waitcnt vmcnt(0)")
    g(f"buffer_atomic_add v253, v250, {srd(SDBG)}, s{sT2} offen sc1")
    g("s_mov_b64 exec, -1")
    g.lab("L_c_nocnt")


def c_wrd(par, p, slot):
    b = WF + 16*slot
    return [f"ds_read_b64_tr_b16 {v(b+tl*8+j*4+h*2,2)}, v{vWA+2*par+tl} offset:{p*8192 + j*4096 + h*512}"
            for tl in range(2) for j in range(2) for h in range(2)]

def c_xrd(par, t):
    return [f"ds_read_b128 {v(XF+t*8+j*4,4)}, v{vXA+j} offset:{par*16384 + t*2048}" for j in range(2)]


def c_kloop(g, typ):
    L = f"L_ck{typ}"
    g("s_barrier")
    g.stamp(1)
    w = c_wrd(0, 0, 0)
    for l in w[:4]: g(l)
    for l in c_xrd(0, 0): g(l)
    for l in w[4:]: g(l)
    for t in range(1, 4):
        for l in c_xrd(0, t): g(l)
    g(f"s_mov_b32 s{sLOOP}, 0")
    g.align(3)
    g.lab(L)
    gp = 0
    for par in range(2):
        for p in range(5):
            slot = gp % 2
            nx = c_wrd(par, p+1, 1-slot) if p < 4 else c_wrd(1-par, 0, 1-slot)
            g("s_waitcnt lgkmcnt(6)" if p == 0 else "s_waitcnt lgkmcnt(0)")
            if p in (1, 4): g("s_barrier")
            b = WF + 16*slot
            ri = 0
            swap = (typ == "A" and p == 1)
            for t in range(4):
                if p == 0 and t > 0:
                    g(f"s_waitcnt lgkmcnt({6-2*t + ri})")
                for tl in range(2):
                    for j in range(2):
                        wf, xf = b+tl*8+j*4, XF+t*8+j*4
                        if swap: mfma(g, accr(p, tl, t), xf, wf)
                        else: mfma(g, accr(p, tl, t), wf, xf)
                        if ri < 8:
                            g(nx[ri]); ri += 1
                if p == 4:
                    for l in c_xrd(1-par, t): g(l)
            gp += 1
    g(f"s_add_u32 s{sLOOP}, s{sLOOP}, 1\ns_cmp_lt_u32 s{sLOOP}, 4\ns_cbranch_scc1 {L}")
    g("s_waitcnt lgkmcnt(0)")
    g.stamp(2)


def ffn_pair(g, ga, ua, csg, csu, mr, dst):
    pkfma_negb(g, ga, csg, mr); pkfma_negb(g, ga+2, csg+2, mr)
    pkfma_negb(g, ua, csu, mr); pkfma_negb(g, ua+2, csu+2, mr)
    for k in range(4): g(f"v_max_f32 v{ga+k}, 0, v{ga+k}")
    pkmul_b(g, ua, mr, 1); pkmul_b(g, ua+2, mr, 1)
    pkmul(g, ga, ua); pkmul(g, ga+2, ua+2)
    cvt(g, dst, ga); cvt(g, dst+1, ga+2)


MR = 160
def c_epi_common(g):
    g(f"v_and_b32 v232, 15, v{vLANE}\nv_lshrrev_b32 v233, 4, v{vLANE}")
    g(f"s_lshr_b32 s{sT0}, s{sWAVE}, 1\ns_and_b32 s{sT1}, s{sWAVE}, 1")
    g(f"s_lshl_b32 s{sT2}, s{sT0}, 8\ns_add_u32 s{sT2}, s{sT2}, {MEAN}")
    g(f"v_lshl_add_u32 v234, v232, 2, s{sT2}")
    g(f"v_lshl_add_u32 v235, v233, 4, s{sT2}")
    g(f"s_lshl_b32 s{sT2}, s{sT1}, 7\ns_add_u32 s{sT2}, s{sT2}, {CSUM}")
    g(f"v_lshl_add_u32 v236, v233, 4, s{sT2}")
    g(f"v_lshl_add_u32 v237, v232, 2, s{sT2}")
    for t in range(4):
        g(f"ds_read2_b32 {v(MR+2*t,2)}, v234 offset0:{t*16} offset1:{t*16 + (RSTD-MEAN)//4}")
    g(f"v_lshlrev_b32 v231, 4, v{vLANE}")
    g(f"s_lshl_b32 s{sHB}, s{sRB}, 1\ns_add_u32 s{sHB}, s{sHB}, s{sT0}\ns_mul_i32 s{sHB}, s{sHB}, {72*4096}")


def c_flag(g, bs=False):
    g.c("publish: drain own stores, then set this wave's flag")
    g(f"s_lshl_b32 s{sT2}, s{sRB}, 4\ns_add_u32 s{sT2}, s{sT2}, s{sCS}\ns_lshl_b32 s{sT2}, s{sT2}, 7\ns_lshl_b32 s{sT3}, s{sWAVE}, 2")
    g(f"s_add_u32 s{sT2}, s{sT2}, s{sT3}\ns_add_u32 s{sT2}, s{sT2}, {FLAGS}")
    g("v_mov_b32 v238, 1\nv_mov_b32 v239, 0")
    g.hstamp("e")
    if bs: g("s_barrier")
    g("s_waitcnt vmcnt(0)")
    g("s_mov_b64 exec, 1")
    g(f"buffer_store_dword v238, v239, {srd(SW)}, s{sT2} offen sc1")
    g("s_mov_b64 exec, -1")
    g.stamp(3)


def c_epi_B(g):
    g.c("type B epilogue: panels G0,U0,G1,U1,M")
    c_epi_common(g)
    CS = 168
    for p in range(5):
        for tl in range(2):
            g(f"ds_read_b128 {v(CS+(p*2+tl)*4,4)}, v236 offset:{p*256 + tl*64}")
    g(f"s_and_b32 s{sT2}, s{sCS}, 7\ns_mul_i32 s{sT2}, s{sT2}, 5\ns_add_u32 s{sT2}, s{sT2}, 16")
    g(f"s_and_b32 s{sT3}, s{sCS}, 1")
    g(f"s_add_u32 s{sXB}, s{sT2}, s{sT3}\ns_add_u32 s{sXB}, s{sXB}, s{sT1}\ns_lshl_b32 s{sXB}, s{sXB}, 12\ns_add_u32 s{sXB}, s{sXB}, s{sHB}")
    g(f"s_xor_b32 s{sT3}, s{sT3}, 1\ns_lshl_b32 s{sT3}, s{sT3}, 2\ns_add_u32 s{sQB}, s{sT2}, s{sT3}\ns_lshl_b32 s{sQB}, s{sQB}, 12\ns_add_u32 s{sQB}, s{sQB}, s{sHB}")
    g(f"s_lshl_b32 s{sT3}, s{sT1}, 3\ns_add_u32 s{sQB}, s{sQB}, s{sT3}")
    g(f"s_add_u32 s{sGB}, s{sXB}, 8192")
    g("s_waitcnt lgkmcnt(0)")
    for t in range(4): g(f"v_mul_f32 v{MR+2*t+1}, v{MR+2*t+1}, v{MR+2*t+1}")
    n = 0
    for f in range(2):
        for t in range(4):
            d = 208 + 4*(n % 2); n += 1
            for tl in range(2):
                ffn_pair(g, accr(2*f, tl, t), accr(2*f+1, tl, t), CS+((2*f)*2+tl)*4, CS+((2*f+1)*2+tl)*4, MR+2*t, d+2*tl)
            g(f"buffer_store_dwordx4 {v(d,4)}, v231, {srd(SW)}, s{sXB if f == 0 else sGB} offen offset:{t*1024} sc1")
    for t in range(4):
        d = 208 + 4*(n % 2); n += 1
        ffn_pair(g, accr(4, 0, t), accr(4, 1, t), CS+32, CS+36, MR+2*t, d)
        g(f"buffer_store_dwordx2 {v(d,2)}, v231, {srd(SW)}, s{sQB} offen offset:{t*1024} sc1")
    c_flag(g, bs=g.o.get("bs", 1))


def c_epi_A(g):
    g.c("type A epilogue: panels K,V(swapped),Q,G,U")
    c_epi_common(g)
    CS = 168
    CV = 200
    RV = {2: 240, 3: 248, 0: 240, 1: 248}
    VP = lambda hh, par: 204 + (hh*2+par)*6
    Kp = lambda hh, t: accr(0, hh, t)
    Qp = lambda hh, t: accr(2, hh, t)
    for tl in range(2):
        g(f"ds_read_b128 {v(CS+tl*4,4)}, v236 offset:{tl*64}")
    g(f"ds_read2_b32 {v(CV,2)}, v237 offset0:64 offset1:80")
    def rowstats(t):
        g(f"ds_read_b128 {v(RV[t],4)}, v235 offset:{t*64}")
        g(f"ds_read_b128 {v(RV[t]+4,4)}, v235 offset:{t*64 + RSTD - MEAN}")
    rowstats(2); rowstats(3)
    g("s_waitcnt lgkmcnt(0)")
    for k, p in ((1, 2), (2, 3), (3, 4)):
        for tl in range(2):
            g(f"ds_read_b128 {v(CS+(k*2+tl)*4,4)}, v236 offset:{p*256 + tl*64}")
    def fix_tok(a, cs, t, dst):
        pkfma_negb(g, a, cs, MR+2*t); pkfma_negb(g, a+2, cs+2, MR+2*t)
        pkmul_b(g, a, MR+2*t, 1); pkmul_b(g, a+2, MR+2*t, 1)
        cvt(g, dst, a); cvt(g, dst+1, a+2)
    def fix_row(hh, t):
        a = accr(1, hh, t); dst = VP(hh, t & 1) + 2 + 2*(t >> 1)
        pkfma_negb(g, a, RV[t], CV, hh); pkfma_negb(g, a+2, RV[t]+2, CV, hh)
        pkmul(g, a, RV[t]+4); pkmul(g, a+2, RV[t]+6)
        cvt(g, dst, a); cvt(g, dst+1, a+2)
    for t in (2, 3):
        for hh in range(2): fix_row(hh, t)
    rowstats(0); rowstats(1)
    for t in (2, 3):
        for hh in range(2): fix_tok(accr(0, hh, t), CS+hh*4, t, Kp(hh, t))
    g(f"v_and_b32 v202, 7, v232\nv_lshl_add_u32 v202, v233, 3, v202\nv_lshlrev_b32 v202, 3, v202")
    g(f"v_and_b32 v203, 1, v233\nv_lshl_add_u32 v203, v203, 4, v232\nv_lshlrev_b32 v203, 3, v203")
    g(f"s_lshl_b32 s{sT2}, s{sT1}, 11\ns_add_u32 s{sT2}, s{sT2}, {EX}")
    g(f"v_add_u32 v202, s{sT2}, v202\nv_add_u32 v203, s{sT2}, v203")
    g(f"s_cmp_ge_u32 s{sWAVE}, 2\ns_cbranch_scc1 L_a_noexp")
    g("s_mov_b32 exec_lo, 0xff00ff00\ns_mov_b32 exec_hi, 0xff00ff00")
    for hh in range(2):
        for par in range(2):
            g(f"ds_write_b64 v202, {v(Kp(hh, 2+par),2)} offset:{4096 + hh*1024 + par*512}")
    g("s_mov_b32 exec_lo, 0\ns_mov_b32 exec_hi, -1")
    for hh in range(2):
        for par in range(2):
            g(f"ds_write_b64 v203, {v(VP(hh,par)+4,2)} offset:{4096 + hh*1024 + par*512 + 256}")
    g("s_mov_b64 exec, -1")
    g.lab("L_a_noexp")
    g(f"s_lshl_b32 s{sT2}, s{sT0}, 12")
    g(f"v_add_u32 v202, s{sT2}, v202\nv_add_u32 v203, s{sT2}, v203")
    g("s_waitcnt lgkmcnt(0)")
    for t in (0, 1):
        for hh in range(2): fix_row(hh, t)
    for t in (0, 1):
        for hh in range(2): fix_tok(accr(0, hh, t), CS+hh*4, t, Kp(hh, t))
    for t in range(4):
        for hh in range(2): fix_tok(accr(2, hh, t), CS+8+hh*4, t, Qp(hh, t))
    g.hstamp("a1")
    g(f"s_lshl_b32 s{sT2}, s{sCS}, 1\ns_add_u32 s{sT2}, s{sT2}, s{sT1}\ns_lshl_b32 s{sT2}, s{sT2}, 12\ns_add_u32 s{sXB}, s{sT2}, s{sHB}")
    g(f"s_add_u32 s{sQB}, s{sXB}, {56*4096}")
    for t in range(4): g(f"v_mul_f32 v{MR+2*t+1}, v{MR+2*t+1}, v{MR+2*t+1}")
    for t in range(4):
        d = 240 + 4*(t % 2)
        for tl in range(2):
            ffn_pair(g, accr(3, tl, t), accr(4, tl, t), CS+16+tl*4, CS+24+tl*4, MR+2*t, d+2*tl)
        g(f"buffer_store_dwordx4 {v(d,4)}, v231, {srd(SW)}, s{sXB} offen offset:{t*1024} sc1")
    g.hstamp("a2")
    MO, MP, MP0, ONE = 168, 172, 176, 180
    g("v_lshlrev_b32 v184, 2, v233\nv_sub_u32 v184, v232, v184")
    g("v_mov_b32 v185, 0xff800000\nv_mov_b32 v186, 0")
    for r in range(4):
        g(f"v_subrev_u32 v187, {r}, v184")
        g(f"v_cmp_gt_u32 vcc, 8, v187\nv_add_u32 v187, 8, v187\ns_nop 0\nv_cndmask_b32 v{MO+r}, v185, v186, vcc")
        g(f"v_cmp_gt_i32 vcc, 0, v187\ns_nop 1\nv_cndmask_b32 v{MP+r}, v185, v186, vcc")
    g(f"s_or_b32 s{sT2}, s{sRB}, s{sT0}\ns_cmp_eq_u32 s{sT2}, 0\ns_cselect_b64 vcc, -1, 0")
    for r in range(4):
        g(f"v_cndmask_b32 v{MP0+r}, v{MP+r}, v185, vcc")
        g(f"v_mov_b32 v{ONE+r}, 0x3f803f80")
    g(f"s_mov_b32 s{sMASK}, 0x3eb8aa3b\ns_mov_b32 s{sMASK+1}, 0x3eb8aa3b")
    EK = 184
    def batch(ts):
        units = [(hh, t) for t in ts for hh in range(2)]
        S = lambda u: 96 + 8*u
        Mx = lambda u: 128 + 2*u
        P = lambda u: 136 + 4*u
        O = lambda u: 96 + 8*u
        for u, (hh, t) in enumerate(units):
            kp = EK + (hh*2+t)*2 if t < 2 else Kp(hh, t-2)
            mfma16(g, S(u), kp, Qp(hh, t))
            mfma16(g, S(u)+4, Kp(hh, t), Qp(hh, t))
        g("s_nop 3")
        for u, (hh, t) in enumerate(units):
            mp = MP0 if t < 2 else MP
            for k in range(2):
                g(f"v_pk_fma_f32 {v(S(u)+2*k,2)}, {v(S(u)+2*k,2)}, s[{sMASK}:{sMASK+1}], {v(mp+2*k,2)}")
            for k in range(2):
                g(f"v_pk_fma_f32 {v(S(u)+4+2*k,2)}, {v(S(u)+4+2*k,2)}, s[{sMASK}:{sMASK+1}], {v(MO+2*k,2)}")
        for u in range(4): g(f"v_max3_f32 v{Mx(u)}, v{S(u)}, v{S(u)+1}, v{S(u)+2}")
        for u in range(4): g(f"v_max3_f32 v{Mx(u)}, v{Mx(u)}, v{S(u)+3}, v{S(u)+4}")
        for u in range(4): g(f"v_max3_f32 v{Mx(u)}, v{Mx(u)}, v{S(u)+5}, v{S(u)+6}")
        for u in range(4): g(f"v_max_f32 v{Mx(u)}, v{Mx(u)}, v{S(u)+7}")
        for sw in ("v_permlane32_swap_b32", "v_permlane16_swap_b32"):
            for u in range(4): g(f"v_mov_b32 v{Mx(u)+1}, v{Mx(u)}")
            g("s_nop 0")
            for u in range(4): g(f"{sw} v{Mx(u)}, v{Mx(u)+1}")
            for u in range(4): g(f"v_max_f32 v{Mx(u)}, v{Mx(u)}, v{Mx(u)+1}")
        for u in range(4):
            for k in range(4):
                g(f"v_pk_add_f32 {v(S(u)+2*k,2)}, {v(S(u)+2*k,2)}, {v(Mx(u),2)} op_sel_hi:[1,0] neg_lo:[0,1] neg_hi:[0,1]")
        for u in range(4):
            for k in range(8): g(f"v_exp_f32 v{S(u)+k}, v{S(u)+k}")
        g("s_nop 0")
        for u in range(4):
            for k in range(4): cvt(g, P(u)+k, S(u)+2*k)
        g("s_nop 0")
        for u, (hh, t) in enumerate(units):
            mfma0(g, O(u), VP(hh, t & 1) + 2*(t >> 1), P(u))
            mfma0(g, O(u)+4, ONE, P(u))
        g("s_nop 4")
        for u in range(4): g(f"v_rcp_f32 v{Mx(u)}, v{O(u)+4}")
        g("s_nop 0")
        for u in range(4):
            pkmul_b(g, O(u), Mx(u)); pkmul_b(g, O(u)+2, Mx(u))
        for u, (hh, t) in enumerate(units):
            d = 152 + 4*(u >> 1) + 2*hh
            cvt(g, d, O(u)); cvt(g, d+1, O(u)+2)
            if hh == 1:
                g(f"buffer_store_dwordx4 {v(d-2,4)}, v231, {srd(SW)}, s{sQB} offen offset:{t*1024} sc1")
    batch((2, 3))
    g.hstamp("a3")
    g("s_barrier")
    g.hstamp("a4")
    for hh in range(2):
        for par in range(2):
            g(f"ds_read_b64 {v(EK+(hh*2+par)*2,2)}, v202 offset:{hh*1024 + par*512}")
            g(f"ds_read_b64 {v(VP(hh,par),2)}, v203 offset:{hh*1024 + par*512 + 256}")
    g("s_waitcnt lgkmcnt(0)")
    batch((0, 1))
    c_flag(g)


W2F, HS, NHS, vHO = 64, 208, 11, 252
def w2_pattern(g, dst, lane, base_sgpr, t0):
    g(f"v_lshrrev_b32 v{t0}, 2, v{lane}\nv_and_b32 v{t0+1}, 3, v{lane}")
    g(f"v_lshlrev_b32 v{t0+2}, 7, v{t0}\nv_lshl_add_u32 v{t0+2}, v{t0+1}, 3, v{t0+2}\nv_add_u32 v{t0+2}, s{base_sgpr}, v{t0+2}")
    g(f"v_bfe_u32 v{t0}, v{t0}, 1, 2")
    for n in range(4):
        g(f"v_xor_b32 v{t0+1}, {n}, v{t0}\nv_lshl_add_u32 v{dst+n}, v{t0+1}, 5, v{t0+2}")

def w2_reads(i, areg, off):
    return [f"ds_read_b64_tr_b16 {v(W2F+(i*4+n)*4+2*h,2)}, v{areg+n} offset:{off + h*2048}" for n in range(4) for h in range(2)]


def c_w2(g):
    g.c("C waves: fetch their W2 fragments from LDS")
    A = 240
    w2_pattern(g, A, vLANE, sJ4K, 232)
    g("s_barrier")
    g.hstamp("cBW")
    for i, off in ((0, WR[0]), (2, WR[0]+16384), (3, WR[1]), (5, WR[1]+16384)):
        for l in w2_reads(i, A, off): g(l)
    g(f"s_sub_u32 s{sT0}, s{sN6}, s{sJ4K}\ns_sub_u32 s{sT1}, s{sSTG}, s{sJ4K}")
    for n in range(4): g(f"v_add_u32 v{A+4+n}, {XR[0]}, v{A+n}")
    for n in range(4): g(f"v_add_u32 v{A+8+n}, s{sT0}, v{A+n}")
    for n in range(4): g(f"v_add_u32 v{A+12+n}, s{sT1}, v{A+n}")
    for l in w2_reads(1, A+4, 0) + w2_reads(4, A+4, 16384) + w2_reads(6, A+8, 0) + w2_reads(7, A+12, 0) + w2_reads(8, A+12, 4096): g(l)
    g(f"v_mov_b32 v253, v{vLANE}")
    g("s_waitcnt lgkmcnt(0)")
    g("s_barrier")


hX, hXH, hQ, hG, hM, hW2, hA2, hHW, hHX, hCA, hSA, hLANE = 208, 212, 213, 215, 217, 219, 220, 224, 226, 228, 232, 233

class HQ:
    def __init__(self, g): self.g = g; self.q = []
    def op(self, tag): self.q.append(tag)
    def younger(self, tags):
        idx = max(i for i, t in enumerate(self.q) if t in tags)
        return len(self.q) - 1 - idx
    def mark(self): return len(self.q)
    def since(self, m): return len(self.q) - m


def dma(g, q, tag, vo, sr, so, m0base, m0const, fill="s_nop 0"):
    g(f"s_add_u32 m0, s{m0base}, {m0const}")
    g(fill)
    g(f"buffer_load_dwordx4 v{vo}, {sr}, s{so} offen lds")
    q.op(tag)


def h_setup(g, typ):
    g.c(f"H wave setup type {typ}")
    g("s_setprio 1")
    g("v_lshrrev_b32 v1, 3, v0\nv_and_b32 v2, 7, v0\nv_lshrrev_b32 v3, 1, v1")
    g(f"s_lshl_b32 s{sT0}, s{sJ}, 15")
    g(f"v_xor_b32 v4, v2, v3\nv_lshlrev_b32 v5, 11, v1\nv_add_u32 v5, s{sT0}, v5")
    g(f"v_lshl_add_u32 v{hX}, v4, 4, v5\nv_xor_b32 v4, 4, v4\nv_lshl_add_u32 v{hX+1}, v4, 4, v5\nv_add_u32 v{hX+1}, 16384, v{hX+1}")
    g(f"v_add_u32 v{hX+2}, 1024, v{hX}\nv_add_u32 v{hX+3}, 1024, v{hX+1}")
    g(f"s_lshl_b32 s{sT0}, s{sJ}, 4")
    g(f"v_and_b32 v4, 1, v3\nv_lshlrev_b32 v4, 1, v4\nv_xor_b32 v4, v4, v2\nv_xor_b32 v6, 4, v4")
    g(f"v_add_u32 v5, s{sT0}, v1\nv_add_u32 v7, 8, v5")
    g(f"v_mul_u32_u24 v8, 3584, v5\nv_mul_u32_u24 v9, 3584, v7")
    g(f"v_lshl_add_u32 v{hG}, v4, 4, v8\nv_lshl_add_u32 v{hG+1}, v6, 4, v9")
    g(f"s_lshl_b32 s{sX0}, s{sRB}, 17")
    if typ == "A":
        g(f"v_mul_u32_u24 v8, 3072, v5\nv_mul_u32_u24 v9, 3072, v7")
        g(f"v_lshl_add_u32 v{hQ}, v4, 4, v8\nv_lshl_add_u32 v{hQ+1}, v6, 4, v9")
        g(f"s_lshl_b32 s{sQ0}, s{sCS}, 7\ns_mov_b32 s{sG0}, s{sQ0}")
        g(f"s_lshl_b32 s{sT0}, s{sJ}, 2\nv_and_b32 v10, 3, v1\nv_add_u32 v10, s{sT0}, v10")
        g("v_and_b32 v11, 7, v10\nv_lshrrev_b32 v12, 3, v10\nv_lshl_add_u32 v11, v11, 1, v12\nv_lshlrev_b32 v11, 10, v11")
        g(f"v_lshrrev_b32 v12, 1, v10\nv_xor_b32 v12, v12, v2\nv_lshl_add_u32 v{hXH}, v12, 4, v11")
        g(f"s_cmp_eq_u32 s{sRB}, 0\ns_cselect_b32 s{sM0}, 0, 16384")
    else:
        for cc, row, dst in ((4, 8, hM), (6, 9, hM+1)):
            g(f"v_lshrrev_b32 v10, 2, v{cc}\nv_and_b32 v11, 1, v{cc}\nv_lshl_add_u32 v10, v10, 1, v11\nv_lshl_add_u32 v{dst}, v10, 4, v{row}")
        g(f"v_and_b32 v10, 2, v4\nv_cmp_eq_u32 s[{sMASK}:{sMASK+1}], 0, v10")
        g(f"s_and_b32 s{sT0}, s{sCS}, 7\ns_mul_i32 s{sT0}, s{sT0}, 320\ns_add_u32 s{sT0}, s{sT0}, 1024")
        g(f"s_and_b32 s{sT1}, s{sCS}, 1\ns_lshl_b32 s{sT2}, s{sT1}, 6\ns_add_u32 s{sG0}, s{sT0}, s{sT2}")
        g(f"s_xor_b32 s{sT1}, s{sT1}, 1\ns_lshl_b32 s{sT1}, s{sT1}, 8\ns_add_u32 s{sM0}, s{sT0}, s{sT1}")


def h_slabbase(g, typ, s):
    g(f"s_add_u32 s{sT0}, s{sROT}, {s}\ns_and_b32 s{sT0}, s{sT0}, 7")
    g(f"s_lshl_b32 s{sXB}, s{sT0}, 7\ns_add_u32 s{sXB}, s{sXB}, s{sX0}")
    g(f"s_mul_i32 s{sT1}, s{sT0}, {64*3584}\ns_add_u32 s{sGB}, s{sT1}, s{sG0}")
    if typ == "A":
        g(f"s_mul_i32 s{sQB}, s{sT0}, {64*3072}\ns_add_u32 s{sQB}, s{sQB}, s{sQ0}\ns_sub_u32 s{sMB}, s{sXB}, s{sM0}")
    else:
        g(f"s_add_u32 s{sMB}, s{sT1}, s{sM0}")


def h_panel(g, q, tag, typ, par, p):
    base = WR[par] + p*8192
    if typ == "A":
        vo, sr, so, off = [(hQ, SQ, sQB, 1024), (hQ, SQ, sQB, 2048), (hQ, SQ, sQB, 0), (hG, SG, sGB, 0), (hG, SU, sGB, 0)][p]
    else:
        if p == 4:
            g(f"s_mov_b64 exec, s[{sMASK}:{sMASK+1}]")
            for b in range(2): dma(g, q, tag, hM+b, srd(SG), sMB, sJ2K, base + b*1024)
            g(f"s_not_b64 exec, exec")
            for b in range(2): dma(g, q, tag, hM+b, srd(SU), sMB, sJ2K, base + b*1024)
            g("s_mov_b64 exec, -1")
            return
        vo, sr, so, off = [(hG, SG, sGB, 0), (hG, SU, sGB, 0), (hG, SG, sGB, 128), (hG, SU, sGB, 128)][p]
    for b in range(2):
        if off and b == 0:
            dma(g, q, tag, vo+b, srd(sr), sSO, sJ2K, base + b*1024, f"s_add_u32 s{sSO}, s{so}, {off}")
        else:
            dma(g, q, tag, vo+b, srd(sr), sSO if off else so, sJ2K, base + b*1024)


def h_group(g, q, typ, s, grp):
    par = s & 1
    tag = f"G{grp}({s})"
    if grp == 1:
        h_slabbase(g, typ, s)
        for b in range(4): dma(g, q, tag, hX+b, srd(SX), sXB, sJ4K, XR[par] + b*1024)
        if typ == "A":
            g("s_mov_b32 exec_hi, 0")
            dma(g, q, tag, hXH, srd(SX), sMB, sJH, HALO[par])
            g("s_mov_b64 exec, -1")
        for p in (0, 1): h_panel(g, q, tag, typ, par, p)
    else:
        for p in (2, 3, 4): h_panel(g, q, tag, typ, par, p)


def h_w2dma(g, q, tag, i, m0base, m0const, delta=0):
    for b in range(4):
        g(f"s_add_u32 m0, s{m0base}, {m0const + b*1024}")
        g(f"s_add_u32 s{sSO}, s{sKB+i}, {(b*8192 + delta) & 0xffffffff}")
        g(f"buffer_load_dwordx4 v{hW2}, {w2srd(i)}, s{sSO} offen lds")
        q.op(tag)


def h_setup2(g, typ):
    g(f"v_mov_b32 v{hLANE}, v0")
    g("v_lshrrev_b32 v1, 3, v0\nv_and_b32 v2, 7, v0\nv_bfe_u32 v3, v1, 1, 2\nv_lshlrev_b32 v3, 1, v3\nv_xor_b32 v3, v3, v2")
    g(f"v_lshlrev_b32 v1, 10, v1\nv_lshl_add_u32 v{hW2}, v3, 4, v1")
    w2_pattern(g, hA2, hLANE, sSTG, 1)
    kappa_offsets(g)
    g("v_lshrrev_b32 v4, 4, v0\nv_bfe_u32 v5, v0, 2, 2\nv_and_b32 v6, 3, v0")
    g("v_lshl_add_u32 v7, v4, 3, v5\nv_lshlrev_b32 v7, 7, v7\nv_lshl_add_u32 v7, v6, 3, v7")
    g("v_lshrrev_b32 v8, 1, v5\nv_and_b32 v9, 1, v4\nv_lshl_add_u32 v8, v9, 1, v8")
    cols_panel(g, sT0)
    g(f"s_lshl_b32 s{sT0}, s{sT0}, 13")
    for n in range(4):
        g(f"v_xor_b32 v9, {n}, v8\nv_lshl_add_u32 v9, v9, 5, v7\nv_add_u32 v{hCA+n}, s{sT0}, v9")
    if typ == "A":
        g(f"v_xor_b32 v9, s{sJ}, v8\nv_lshl_add_u32 v{hHW}, v9, 5, v7\nv_add_u32 v{hHW+1}, {WR[1]}, v{hHW}")
        g("v_and_b32 v5, 15, v0\nv_lshrrev_b32 v6, 1, v5\nv_xor_b32 v6, v6, v4")
        g(f"v_lshlrev_b32 v7, 7, v5\nv_add_u32 v7, {HALO[0]}, v7")
        g(f"v_lshl_add_u32 v{hHX}, v6, 4, v7\nv_xor_b32 v6, 4, v6\nv_lshl_add_u32 v{hHX+1}, v6, 4, v7")
        for r in range(8): g(f"v_mov_b32 v{r}, 0")
    g(f"s_and_b32 s{sT0}, s{sROT}, 1\ns_lshl_b32 s{sT0}, s{sT0}, 13\ns_lshr_b32 s{sT1}, s{sCS}, 3\ns_lshl_b32 s{sT1}, s{sT1}, 12")
    g(f"s_add_u32 s{sT0}, s{sT0}, s{sT1}\ns_add_u32 s{sT0}, s{sT0}, {XR[0]}")
    g(f"v_and_b32 v10, 31, v{hLANE}\nv_lshrrev_b32 v11, 5, v{hLANE}\nv_lshl_add_u32 v10, v10, 7, s{sT0}\nv_lshl_add_u32 v{hSA}, v11, 6, v10")
    for r in range(234, 250): g(f"v_mov_b32 v{r}, 0")
    for r in range(250, 254): g(f"v_mov_b32 v{r}, 0x3f803f80")


def h_halo_reads(g, par):
    for pn in range(2):
        for j in range(2):
            for h in range(2):
                g(f"ds_read_b64_tr_b16 {v(8+pn*8+j*4+h*2,2)}, v{hHW+par} offset:{pn*8192 + j*4096 + h*512}")
    for j in range(2):
        g(f"ds_read_b128 {v(24+j*4,4)}, v{hHX+j} offset:{par*2048}")

def h_halo_mfma(g):
    g("s_waitcnt lgkmcnt(0)")
    for j in range(2): mfma(g, 0, 8+j*4, 24+j*4)
    for j in range(2): mfma(g, 4, 24+j*4, 16+j*4)


def h_colsum(g, s, lab, cond):
    if cond == "w1":
        g(f"s_cmp_lg_u32 s{sCLS}, 0\ns_cbranch_scc1 {lab}\ns_cmp_ge_u32 s{sJ}, 2\ns_cbranch_scc1 {lab}")
    else:
        g(f"s_cmp_eq_u32 s{sCLS}, 0\ns_cbranch_scc1 {lab}\ns_cmp_lg_u32 s{sJ}, 0\ns_cbranch_scc1 {lab}")
    for n in range(4):
        for j in range(2):
            for h in range(2):
                g(f"ds_read_b64_tr_b16 {v(32+n*8+j*4+h*2,2)}, v{hCA+n} offset:{WR[s&1] + j*4096 + h*512}")
    g("s_waitcnt lgkmcnt(0)")
    for n in range(4):
        for j in range(2): mfma(g, 234+n*4, 32+n*8+j*4, 250)
    if s == 1:
        cols_slot(g, sT2)
        g(f"v_lshrrev_b32 v32, 4, v{hLANE}\nv_lshlrev_b32 v32, 4, v32")
        g("s_mov_b32 exec_lo, 0x00010001\ns_mov_b32 exec_hi, 0x00010001\ns_nop 3")
        for n in range(4):
            g(f"buffer_store_dwordx4 {v(234+n*4,4)}, v32, {srd(SW)}, s{sT2} offen offset:{n*64} sc1")
        g("s_mov_b64 exec, -1")
    g.lab(lab)


def h_stats(g, s, lab):
    g(f"s_cmp_lg_u32 s{sJ}, 2\ns_cbranch_scc1 {lab}")
    for qq in range(4):
        g(f"ds_read_b128 {v(32+qq*4,4)}, v{hSA} offset:{(s&1)*16384 + qq*16}")
    g("s_waitcnt lgkmcnt(0)")
    for d in range(16):
        g(f"v_lshlrev_b32 v48, 16, v{32+d}\nv_and_b32 v49, 0xffff0000, v{32+d}")
        g("v_add_f32 v234, v234, v48\nv_add_f32 v235, v235, v49\nv_fmac_f32 v236, v48, v48\nv_fmac_f32 v237, v49, v49")
    if s == 1:
        g("v_add_f32 v234, v234, v235\nv_add_f32 v235, v236, v237")
        stats_slot(g, sT2)
        g("v_mov_b32 v236, v234\nv_mov_b32 v237, v235\ns_nop 1")
        g("v_permlane32_swap_b32 v234, v236\nv_permlane32_swap_b32 v235, v237")
        g(f"v_add_f32 v234, v234, v236\nv_add_f32 v235, v235, v237\nv_lshlrev_b32 v32, 3, v{hLANE}")
        g("s_mov_b32 exec_hi, 0")
        g(f"buffer_store_dwordx2 v[234:235], v32, {srd(SW)}, s{sT2} offen sc1")
        g("s_mov_b64 exec, -1")
    g.lab(lab)


def spin(g, lab, sleep):
    if sleep: g(f"s_sleep {sleep}")
    g(f"s_add_u32 s{sLOOP}, s{sLOOP}, 1\ns_cmp_lt_u32 s{sLOOP}, 0x40000\ns_cbranch_scc1 {lab}")


def h_count_issue(g, typ):
    lab = f"L_h{typ}_ci"
    g(f"v_and_b32 v60, 1, v{hLANE}\nv_lshlrev_b32 v60, 7, v60")
    g(f"s_cmp_lg_u32 s{sJ}, 3\ns_cbranch_scc1 {lab}")
    g(f"buffer_load_dword v61, v60, {srd(SDBG)}, 0 offen sc1")
    g.lab(lab)


def h_count_check(g, typ, n_younger):
    lab = f"L_h{typ}_cnt"
    g(f"s_cmp_lg_u32 s{sJ}, 3\ns_cbranch_scc1 {lab}_done\ns_mov_b32 s{sLOOP}, 0")
    g(f"s_waitcnt vmcnt({n_younger})")
    g.lab(lab)
    g(f"v_cmp_gt_u32 vcc, 128, v61\ns_nop 3\ns_cmp_eq_u64 vcc, 0\ns_cbranch_scc1 {lab}_done")
    g(f"s_sleep 4\nbuffer_load_dword v61, v60, {srd(SDBG)}, 0 offen sc1\ns_waitcnt vmcnt(0)")
    spin(g, lab, 0)
    g.lab(lab + "_done")


def gather_loads(g, typ, who):
    if who == "cols":
        for j in range(4):
            g(f"buffer_load_dwordx4 {v(32+j*4,4)}, v58, {srd(SW)}, s{sHB} offen offset:{j*1280} sc1")
            g(f"buffer_load_dword v{48+j}, v59, {srd(SW)}, s{sHB} offen offset:{j*1280} sc1")
    else:
        for j in range(4):
            g(f"buffer_load_dwordx4 {v(32+j*4,4)}, v58, {srd(SW)}, s{sHB} offen offset:{j*1024} sc1")


def h_gather_issue(g, typ):
    P = f"L_h{typ}_gi"
    g(f"v_lshlrev_b32 v58, 4, v{hLANE}\nv_lshlrev_b32 v59, 2, v{hLANE}\nv_add_u32 v59, 1024, v59")
    g(f"s_cmp_eq_u32 s{sJ}, 0\ns_cbranch_scc1 {P}_done")
    g(f"s_cmp_eq_u32 s{sJ}, 3\ns_cbranch_scc1 {P}_c")
    g(f"s_sub_u32 s{sT0}, 2, s{sJ}\ns_sub_u32 s{sT0}, s{sRB}, s{sT0}\ns_max_i32 s{sT0}, s{sT0}, 0")
    g(f"s_lshl_b32 s{sHB}, s{sT0}, 12\ns_add_u32 s{sHB}, s{sHB}, {STATS}")
    gather_loads(g, typ, "stats")
    g(f"s_branch {P}_done")
    g.lab(P + "_c")
    g(f"s_lshl_b32 s{sHB}, s{sCS}, 13\ns_add_u32 s{sHB}, s{sHB}, {COLS}")
    gather_loads(g, typ, "cols")
    g.lab(P + "_done")


def h_gather_finish(g, typ, n_younger):
    P = f"L_h{typ}_gf"
    g(f"s_mov_b32 s{sLOOP}, 0")
    g(f"s_cmp_eq_u32 s{sJ}, 0\ns_cbranch_scc1 {P}_done")
    g(f"s_cmp_eq_u32 s{sJ}, 3\ns_cbranch_scc1 {P}_c")
    g(f"s_waitcnt vmcnt({n_younger})")
    g.lab(P + "_s")
    g("v_max3_u32 v52, v32, v33, v34")
    for k in range(35, 48, 2):
        if k < 47: g(f"v_max3_u32 v52, v52, v{k}, v{k+1}")
        else: g(f"v_max_u32 v52, v52, v{k}")
    g(f"v_cmp_eq_u32 vcc, -1, v52\ns_nop 3\ns_cmp_eq_u64 vcc, 0\ns_cbranch_scc1 {P}_sok")
    g("s_sleep 2")
    gather_loads(g, typ, "stats")
    g("s_waitcnt vmcnt(0)")
    spin(g, P + "_s", 0)
    g.lab(P + "_sok")
    for k in range(4):
        g(f"v_add_f32 v{32+k}, v{32+k}, v{36+k}\nv_add_f32 v{40+k}, v{40+k}, v{44+k}")
    for k in range(4): g(f"v_add_f32 v{32+k}, v{32+k}, v{40+k}")
    g("v_mul_f32 v36, 0x3b000000, v32\nv_mul_f32 v37, 0x3b000000, v34")
    g("v_mul_f32 v38, 0x3b000000, v33\nv_mul_f32 v39, 0x3b000000, v35")
    g("v_fma_f32 v38, -v36, v36, v38\nv_fma_f32 v39, -v37, v37, v39")
    g("v_max_f32 v38, 0, v38\nv_max_f32 v39, 0, v39")
    g("v_add_f32 v38, 0x3727c5ac, v38\nv_add_f32 v39, 0x3727c5ac, v39")
    g("v_rsq_f32 v38, v38\nv_rsq_f32 v39, v39")
    g(f"v_lshlrev_b32 v40, 3, v{hLANE}\nv_add_u32 v40, {MEAN}, v40")
    g(f"s_cmp_eq_u32 s{sJ}, 2\ns_cbranch_scc1 {P}_sw")
    g(f"v_and_b32 v40, 3, v{hLANE}\nv_bfe_u32 v41, v{hLANE}, 3, 1\nv_lshl_add_u32 v40, v41, 2, v40\nv_lshlrev_b32 v40, 3, v40\nv_add_u32 v40, {MEAN+512}, v40")
    g("s_mov_b32 exec_lo, 0\ns_mov_b32 exec_hi, 0xf0f00000")
    g.lab(P + "_sw")
    g(f"ds_write_b64 v40, v[36:37]\nds_write_b64 v40, v[38:39] offset:{RSTD-MEAN}")
    g(f"s_mov_b64 exec, -1\ns_branch {P}_done")
    g.lab(P + "_c")
    g(f"s_waitcnt vmcnt({n_younger})")
    g.lab(P + "_cc")
    g("v_max3_u32 v52, v32, v33, v34")
    for k in range(35, 51, 2): g(f"v_max3_u32 v52, v52, v{k}, v{k+1}")
    g("v_max_u32 v52, v52, v51")
    g(f"v_cmp_eq_u32 vcc, -1, v52\ns_nop 3\ns_cmp_eq_u64 vcc, 0\ns_cbranch_scc1 {P}_cok")
    g("s_sleep 2")
    gather_loads(g, typ, "cols")
    g("s_waitcnt vmcnt(0)")
    spin(g, P + "_cc", 0)
    g.lab(P + "_cok")
    for k in range(4):
        g(f"v_add_f32 v{32+k}, v{32+k}, v{36+k}\nv_add_f32 v{40+k}, v{40+k}, v{44+k}")
    g("v_add_f32 v48, v48, v49\nv_add_f32 v50, v50, v51")
    for k in range(4): g(f"v_add_f32 v{32+k}, v{32+k}, v{40+k}")
    g(f"v_add_f32 v48, v48, v50\nv_add_u32 v58, {CSUM}, v58\nv_add_u32 v59, {CSUM}, v59")
    g("ds_write_b128 v58, v[32:35]\nds_write_b32 v59, v48")
    g.lab(P + "_done")


def h_halo_finish(g):
    g(f"v_and_b32 v32, 15, v{hLANE}\nv_lshrrev_b32 v33, 4, v{hLANE}")
    g(f"s_lshl_b32 s{sT0}, s{sJ}, 6\ns_add_u32 s{sT0}, s{sT0}, {CSUM}")
    g(f"v_lshlrev_b32 v34, 2, v32\nv_lshlrev_b32 v35, 4, v33")
    g(f"v_add_u32 v36, {MEAN+512}, v34\nv_add_u32 v37, {MEAN+512}, v35\nv_add_u32 v38, s{sT0}, v35\nv_add_u32 v39, s{sT0}, v34")
    g(f"ds_read2_b32 v[40:41], v36 offset0:0 offset1:{(RSTD-MEAN)//4}")
    g(f"ds_read_b128 v[44:47], v38\nds_read_b32 v42, v39 offset:256")
    g(f"ds_read_b128 v[48:51], v37\nds_read_b128 v[52:55], v37 offset:{RSTD-MEAN}")
    g(f"s_lshl_b32 s{sT0}, s{sJ}, 10\ns_add_u32 s{sT0}, s{sT0}, {EX}")
    g(f"v_and_b32 v56, 7, v32\nv_lshl_add_u32 v56, v33, 3, v56\nv_lshlrev_b32 v56, 3, v56\nv_lshrrev_b32 v57, 3, v32\nv_lshl_add_u32 v56, v57, 9, v56\nv_add_u32 v56, s{sT0}, v56")
    g(f"v_and_b32 v57, 1, v33\nv_lshl_add_u32 v57, v57, 4, v32\nv_lshlrev_b32 v57, 3, v57\nv_lshrrev_b32 v58, 1, v33\nv_lshl_add_u32 v57, v58, 9, v57\nv_add_u32 v57, s{sT0}, v57")
    g("s_waitcnt lgkmcnt(0)")
    pkfma_negb(g, 0, 44, 40); pkfma_negb(g, 2, 46, 40)
    pkfma_negb(g, 4, 48, 42); pkfma_negb(g, 6, 50, 42)
    pkmul_b(g, 0, 40, 1); pkmul_b(g, 2, 40, 1)
    pkmul(g, 4, 52); pkmul(g, 6, 54)
    cvt(g, 0, 0); cvt(g, 1, 2); cvt(g, 4, 4); cvt(g, 5, 6)
    g("ds_write_b64 v56, v[0:1]\nds_write_b64 v57, v[4:5] offset:256")


def h_start(g, typ):
    q = HQ(g)
    h_setup(g, typ)
    h_group(g, q, typ, 0, 1); h_group(g, q, typ, 0, 2)
    return q


SLOTS = {"S0": (sSTG, 0), "S1": (sSTG, 4096), "R0": (sJ4K, WR[0]), "R1": (sJ4K, XR[0]), "R2": (sJ4K, WR[0]+16384),
         "R3": (sJ4K, WR[1]), "R4": (sJ4K, XR[1]), "R5": (sJ4K, WR[1]+16384), "R6": (sN6, 0)}
CSLOT = ["R0", "R1", "R2", "R3", "R4", "R5", "R6", "S0", "S1"]
SCHED = {
    2: [("H", 0, "S0")], 4: [("H", 1, "S1")], 6: [("r", 0), ("H", 2, "S0")], 8: [("r", 1), ("H", 3, "S1")],
    10: [("r", 2), ("H", 4, "S0")],
    12: [("r", 3), ("H", 5, "S1"), ("H", 6, "R0"), ("H", 7, "R1")],
    13: [("r", 4), ("H", 8, "S0"), ("C", 2)],
    14: [("C", 3), ("C", 4)],
    15: [("C", 5), ("C", 6), ("r", 5), ("r", 6), ("r", 7), ("r", 8), ("BS",), ("C", 0), ("C", 1), ("C", 8), ("C", 7)],
}


def h_main(g, typ, q):
    o = g.o
    h_setup2(g, typ)
    sched = o.get("sched", SCHED)
    DB, DA = -20*32768, -8*32768
    g.hstamp("pre")
    g(f"s_waitcnt vmcnt({q.younger(['G1(0)'])})")
    g.hstamp("w-2")
    g("s_barrier")
    g.hstamp(-2)
    gm = cm = None
    where = {}
    for seg in range(-1, 16):
        s = seg // 2
        after_b1 = (seg % 2 == 1)
        g.c(f"--- H seg {seg}")
        if after_b1:
            sn = s + 1
            if typ == "A" and sn < 8: h_halo_reads(g, sn & 1)
            if seg == -1: h_group(g, q, typ, 1, 1)
            if seg == o.get("gseg", 11):
                h_gather_issue(g, typ); gm = q.mark()
            if s >= 0 and s + 2 < 8: h_group(g, q, typ, s+2, 2)
            if typ == "A" and sn < 8: h_halo_mfma(g)
            if sn < 2:
                h_colsum(g, sn, f"L_h{typ}_cs1_{sn}", "w1")
                h_stats(g, sn, f"L_h{typ}_st_{sn}")
        else:
            if seg == 0: h_group(g, q, typ, 1, 2)
            if seg == 8: h_count_issue(g, typ); cm = q.mark()
            if s + 2 < 8: h_group(g, q, typ, s+2, 1)
            if s < 2: h_colsum(g, s, f"L_h{typ}_cs2_{s}", "w2")
            if seg == 10: h_count_check(g, typ, q.since(cm))
            if seg == 14 and typ == "A": h_halo_finish(g)
        pend = False
        for ev in sched.get(seg, []):
            if ev[0] == "r":
                i = ev[1]; sl = where[i]
                g(f"s_waitcnt vmcnt({q.younger([f'W2({i})'])})")
                if sl[0] == "S": areg, off = hA2, SLOTS[sl][1]
                else:
                    areg, off = 244, 0
                    if pend: g("s_waitcnt lgkmcnt(0)")
                    g(f"s_sub_u32 s{sT0}, s{SLOTS[sl][0]}, s{sSTG}\ns_add_u32 s{sT0}, s{sT0}, {SLOTS[sl][1]}")
                    for n in range(4): g(f"v_add_u32 v{244+n}, s{sT0}, v{hA2+n}")
                for l in w2_reads(i, areg, off): g(l)
                pend = True
            else:
                if pend: g("s_waitcnt lgkmcnt(0)"); pend = False
                if ev[0] == "BS":
                    if typ == "B" and o.get("bs", 1): g("s_barrier")
                elif ev[0] == "H":
                    where[ev[1]] = ev[2]
                    h_w2dma(g, q, f"W2({ev[1]})", ev[1], *SLOTS[ev[2]])
                else:
                    h_w2dma(g, q, "CW", ev[1], *SLOTS[CSLOT[ev[1]]], DB if ev[1] < 5 else DA)
        if seg == o.get("gseg", 11) + 1: h_gather_finish(g, typ, q.since(gm))
        if seg == 15: break
        if after_b1: need = f"G2({s+1})"
        else: need = f"G1({s+1})"
        g.hstamp(f"i{seg}")
        if need in q.q: g(f"s_waitcnt vmcnt({q.younger([need])}) lgkmcnt(0)")
        else: g("s_waitcnt lgkmcnt(0)")
        g.hstamp(f"w{seg}")
        g("s_barrier")
        g.hstamp(seg)
    g.hstamp("i15")
    if typ == "A": g("s_barrier")
    g(f"v_mov_b32 v253, v{hLANE}")
    g("s_waitcnt vmcnt(0) lgkmcnt(0)")
    g.hstamp("w15")
    g("s_barrier")
    g.hstamp("BW")
    g("s_setprio 0")
    g("s_barrier")
    g("s_branch L_P2")


def poll(g, lab, sa):
    g(f"s_mov_b32 s{sLOOP}, 0")
    g.lab(lab)
    g(f"s_load_dwordx2 s[{sP0}:{sP0+1}], s[{sFL}:{sFL+1}], {sa} glc")
    g("s_waitcnt lgkmcnt(0)")
    g(f"s_and_b32 s{sP0}, s{sP0}, s{sP0+1}\ns_cmp_eq_u32 s{sP0}, 1\ns_cbranch_scc1 {lab}_ok")
    spin(g, lab, 1)
    g.lab(lab + "_ok")


def phase2(g):
    g.lab("L_P2")
    g.stamp(4)
    g(f"s_lshr_b32 s{sT0}, s{sRT}, 1\ns_lshl_b32 s{sT0}, s{sT0}, 4\ns_add_u32 s{sT0}, s{sT0}, s{sWAVE}\ns_lshl_b32 s{sT0}, s{sT0}, 7")
    g(f"s_and_b32 s{sT1}, s{sRT}, 1\ns_lshl_b32 s{sT1}, s{sT1}, 3\ns_add_u32 s{sT0}, s{sT0}, s{sT1}\ns_add_u32 s{sT0}, s{sT0}, {FLAGS}")
    g(f"s_add_u32 s{sFL}, s{SW}, s{sT0}\ns_addc_u32 s{sFL+1}, s{SW+1}, 0")
    g(f"s_mul_i32 s{sHB}, s{sRT}, {72*4096}")
    for i in range(9):
        g(f"s_lshr_b32 s{sKB+i}, s{sKB+i}, 15\ns_lshl_b32 s{sKB+i}, s{sKB+i}, 12\ns_add_u32 s{sKB+i}, s{sKB+i}, s{sHB}")
        if i >= 7: g(f"s_add_u32 s{sKB+i}, s{sKB+i}, {56*4096}")
    g(f"v_lshlrev_b32 v{vHO}, 4, v253")
    poll(g, "L_pollB", 1024)
    g.stamp(5)
    order = []
    for grp in ((0, 1), (2, 3), (4,), (5, 6), (7, 8)):
        for t in range(4):
            for i in grp: order.append((i, t))
    steps = []
    n = 0
    for grp in ((0, 1), (2, 3), (4,), (5, 6), (7, 8)):
        for t in range(4):
            steps.append((grp, t, n)); n += len(grp)
    issued = 0
    def issue():
        nonlocal issued
        i, t = order[issued]
        if issued == 20:
            poll(g, "L_pollA", 0)
            g.stamp(6)
        g(f"buffer_load_dwordx4 {v(HS+4*(issued % NHS),4)}, v{vHO}, {srd(SW)}, s{sKB+i} offen offset:{t*1024} sc1")
        issued += 1
    for _ in range(NHS): issue()
    for (grp, t, n0) in steps:
        last = n0 + len(grp) - 1
        g(f"s_waitcnt vmcnt({issued - 1 - last})")
        for nn in range(4):
            for k, i in enumerate(grp):
                d = (nn*4+t)*4
                a = W2F + (i*4+nn)*4
                b = HS + 4*((n0+k) % NHS)
                if i == 0: mfma0(g, d, a, b)
                else: mfma(g, d, a, b)
        for _ in grp:
            if issued < 36: issue()
    g.stamp(7)
    g("v_and_b32 v64, 15, v253\nv_lshrrev_b32 v65, 4, v253\nv_and_b32 v66, 7, v253")
    g(f"s_lshl_b32 s{sT0}, s{sWAVE}, 14")
    g(f"v_lshl_add_u32 v67, v64, 8, s{sT0}\nv_xor_b32 v68, v65, v66")
    g("v_lshl_add_u32 v69, v68, 4, v67\nv_xor_b32 v68, 4, v68\nv_lshl_add_u32 v70, v68, 4, v67")
    g(f"v_lshrrev_b32 v71, 3, v253\ns_lshl_b32 s{sT1}, s{sWAVE}, 3\nv_add_u32 v72, s{sT1}, v71")
    g("v_and_b32 v73, 15, v72\nv_bfe_u32 v74, v72, 4, 1\nv_lshl_add_u32 v73, v73, 1, v74\nv_and_b32 v74, 32, v72\nv_add_u32 v73, v73, v74")
    g("v_lshlrev_b32 v73, 10, v73\nv_lshl_add_u32 v73, v66, 4, v73")
    g(f"s_lshl_b32 s{sT2}, s{sRT}, 16\ns_lshl_b32 s{sT3}, s{sCT}, 7\ns_add_u32 s{sT2}, s{sT2}, s{sT3}")
    g(f"buffer_load_dwordx4 v[76:79], v73, {srd(SX)}, s{sT2} offen")
    for t in range(4):
        for nn in range(4):
            g(f"ds_write_b128 v{69 + (nn & 1)}, {v((nn*4+t)*4,4)} offset:{t*4096 + (nn >> 1)*128}")
    g("v_lshlrev_b32 v74, 1, v66\nv_and_b32 v75, 7, v71\nv_xor_b32 v74, v74, v75")
    g("v_lshlrev_b32 v80, 8, v72\nv_lshl_add_u32 v81, v74, 4, v80\nv_xor_b32 v74, 1, v74\nv_lshl_add_u32 v82, v74, 4, v80")
    g("v_add_u32 v83, 0x10000, v81\nv_add_u32 v84, 0x10000, v82")
    g("s_waitcnt lgkmcnt(0)")
    g.hstamp("r1")
    g("s_barrier")
    g.hstamp("r2")
    for p in range(8):
        for e in range(2):
            g(f"ds_read_b128 {v(96+p*8+e*4,4)}, v{81 + e + 2*(p >> 2)} offset:{(p & 3)*16384}")
    g("s_waitcnt vmcnt(0)")
    for k in range(4):
        g(f"v_lshlrev_b32 v{160+2*k}, 16, v{76+k}\nv_and_b32 v{161+2*k}, 0xffff0000, v{76+k}")
    for p in range(8):
        g(f"s_waitcnt lgkmcnt({14-2*p})")
        for k in range(4):
            g(f"v_pk_add_f32 {v(160+2*k,2)}, {v(160+2*k,2)}, {v(96+p*8+2*k,2)}")
    for k in range(4): cvt(g, 168+k, 160+2*k)
    g(f"buffer_store_dwordx4 v[168:171], v73, {srd(SOUT)}, s{sT2} offen")
    if g.stamps:
        g.stamp(8)
        sw = g.o.get("stampwave", 0)
        tins = "s_memtime" if g.o.get("cyc") else "s_memrealtime"
        g(f"s_waitcnt vmcnt(0)\n{tins} s[22:23]\ns_waitcnt lgkmcnt(0)\ns_cmp_lg_u32 s{sWAVE}, {sw}\ns_cbranch_scc1 L_end")
        if g.o.get("dbgst"):
            g("v_mov_b32 v1, 0\ns_mov_b64 exec, 1\ns_not_b32 s4, s4")
            for k in range(10):
                g(f"v_mov_b32 v2, s{4+2*k}\ns_nop 0\nbuffer_atomic_umax v2, v1, {srd(SDBG)}, 0 offen offset:{8+4*k} sc1\ns_waitcnt vmcnt(0)")
            g("s_endpgm")
        g(f"s_and_b32 s{sT0}, s{sRT}, 3\ns_lshl_b32 s{sT1}, s{sCT}, 2\ns_add_u32 s{sT0}, s{sT0}, s{sT1}\ns_lshl_b32 s{sT0}, s{sT0}, 3\ns_lshr_b32 s{sT1}, s{sRT}, 2\ns_add_u32 s{sT0}, s{sT0}, s{sT1}")
        g(f"s_lshl_b32 s{sT0}, s{sT0}, 8\ns_add_u32 s{sT0}, s{sT0}, {STAMP}\nv_mov_b32 v1, 0")
        for k in range(10):
            g(f"v_mov_b32 v2, s{4+2*k}\nv_mov_b32 v3, s{5+2*k}\nbuffer_store_dwordx2 v[2:3], v1, {srd(SW)}, s{sT0} offen offset:{8*k}\ns_nop 1")
    g.lab("L_end")
    g("s_endpgm")


HEAD = """; Kernarg layout for this problem (80 bytes, ptrs only, base s[0:1]):
; @launch grid=(256,1,1) block=(512,1,1) lds=163840
.amdgcn_target "amdgcn-amd-amdhsa--gfx950"
.text
.globl {k}
.p2align 8
.type {k},@function
{k}:
"""
TAIL = """.section .rodata,"a"
.p2align 6
.amdhsa_kernel {k}
  .amdhsa_next_free_vgpr 256
  .amdhsa_next_free_sgpr 102
  .amdhsa_accum_offset 256
  .amdhsa_group_segment_fixed_size 0
  .amdhsa_kernarg_size 80
  .amdhsa_user_sgpr_count 2
  .amdhsa_user_sgpr_kernarg_segment_ptr 1
  .amdhsa_system_sgpr_workgroup_id_x 1
  .amdhsa_float_denorm_mode_32 3
.end_amdhsa_kernel
"""


def build(stamps=False, opts=None):
    g = G(stamps, opts)
    prologue(g)
    g(f"s_cmp_lt_u32 s{sCS}, 8\ns_cbranch_scc1 L_HA")
    qb = h_start(g, "B")
    g("s_branch L_HB")
    g.lab("L_HA")
    qa = h_start(g, "A")
    h_main(g, "A", qa)
    g.lab("L_HB")
    h_main(g, "B", qb)
    g.lab("L_C")
    c_setup(g)
    g(f"s_cmp_ge_u32 s{sCS}, 8\ns_cbranch_scc1 L_CB")
    c_kloop(g, "A")
    c_epi_A(g)
    g("s_branch L_CW")
    g.lab("L_CB")
    c_kloop(g, "B")
    c_epi_B(g)
    g.lab("L_CW")
    c_w2(g)
    phase2(g)
    pad = "    .fill 7680, 4, 0xBF800000\n"
    return HEAD.format(k=KNAME) + g.text() + pad + TAIL.format(k=KNAME)


if __name__ == "__main__":
    ap = argparse.ArgumentParser()
    ap.add_argument("-o", default="parallel_sum__sliding_local_dilated__glu_gated_reglu__prompt.s")
    ap.add_argument("--stamps", action="store_true")
    ap.add_argument("--opt", action="append", default=[])
    a = ap.parse_args()
    opts = {}
    for kv in a.opt:
        k_, val = kv.split("=", 1)
        opts[k_] = eval(val)
    txt = build(a.stamps, opts)
    open(a.o, "w").write(txt)
    import hazard
    for e in hazard.check(txt): print("HAZARD", e)
```

```python
import sys, argparse

KNAME = "parallel_sum__sliding_local_dilated__glu_gated_reglu__prompt_kernel"

WR = [0, 40960]
def poff(par, p):
    return p*8192 if par == 0 else (40960 if p == 4 else 49152 + p*8192)
XR = [81920, 98304]
HALO = [114688, 116736]
STG = 118784
CSUM = 151552
MEAN = 152832
RSTD = 153408
EX = 153984
LDS_BYTES = 163840
FLAGS = 16 << 20
STATS = FLAGS + (64 << 10)
COLS = FLAGS + (128 << 10)
STAMP = 200 << 20
KP = 5120

SX, SQ, SG, SU, SD, SO, SW, SOUT, SDBG = 24, 28, 32, 36, 40, 44, 48, 52, 56
def srd(n): return f"s[{n}:{n+3}]"
sWAVE, sRB, sCS, sROT, sRT, sCT, sJ, sT0, sT1, sT2, sT3 = 60, 61, 62, 63, 64, 65, 66, 67, 68, 69, 70
sXB, sQB, sGB, sMB, sHB = 71, 72, 73, 74, 75
sX0, sQ0, sG0, sM0 = 76, 77, 78, 79
sJ2K, sJ4K, sJH, sSTG, sN6, sSO = 80, 81, 82, 83, 84, 85
sMASK = 86
sKB = 88
sCLS, sLOOP, sRR = 97, 98, 99
sFL = 100
sPS = 76
sP0 = 2


class G:
    def __init__(self, stamps=False, opts=None):
        self.L = []
        self.stamps = stamps
        self.o = opts or {}

    def __call__(self, s):
        for l in s.split("\n"):
            l = l.strip()
            if l: self.L.append("    " + l)

    def lab(self, n): self.L.append(n + ":")
    def c(self, s): self.L.append("    ; " + s)
    def align(self, n=3): self.L.append(f"    .p2align {n}, , 4" if False else f"    .p2alignl {n}, 0xBF800000")
    def text(self): return "\n".join(self.L) + "\n"
    def stamp(self, k):
        self.hstamp(f"c{k}")
    def hstamp(self, key):
        if not self.stamps: return
        lst = self.o.get("hst", [f"c{k}" for k in range(1, 9)])
        ins = "s_memtime" if self.o.get("cyc") else "s_memrealtime"
        if key == "c0": self(f"{ins} s[4:5]")
        elif key in lst:
            k = 1 + lst.index(key)
            assert k <= 8
            self(f"{ins} s[{4+2*k}:{5+2*k}]")


def v(n, w=1): return f"v{n}" if w == 1 else f"v[{n}:{n+w-1}]"
def mfma(g, d, a, b): g(f"v_mfma_f32_16x16x32_bf16 {v(d,4)}, {v(a,4)}, {v(b,4)}, {v(d,4)}")
def mfma0(g, d, a, b): g(f"v_mfma_f32_16x16x32_bf16 {v(d,4)}, {v(a,4)}, {v(b,4)}, 0")
def mfma16(g, d, a, b): g(f"v_mfma_f32_16x16x16_bf16 {v(d,4)}, {v(a,2)}, {v(b,2)}, 0")

def bsel(hi, pos, n):
    lo = [0]*n; h = [1]*n
    lo[pos] = hi; h[pos] = hi
    return f"op_sel:[{','.join(map(str,lo))}] op_sel_hi:[{','.join(map(str,h))}]"
def pkfma_negb(g, d, a, bb, hi=0):
    g(f"v_pk_fma_f32 {v(d,2)}, {v(a,2)}, {v(bb,2)}, {v(d,2)} {bsel(hi,1,3)} neg_lo:[0,1,0] neg_hi:[0,1,0]")
def pkmul_b(g, d, bb, hi=0): g(f"v_pk_mul_f32 {v(d,2)}, {v(d,2)}, {v(bb,2)} {bsel(hi,1,2)}")
def pkmul(g, d, a): g(f"v_pk_mul_f32 {v(d,2)}, {v(d,2)}, {v(a,2)}")
def cvt(g, d, a): g(f"v_cvt_pk_bf16_f32 v{d}, v{a}, v{a+1}")


def prologue(g):
    g("s_cmp_ge_u32 s2, 256\ns_cbranch_scc1 L_end")
    g("s_load_dwordx4 s[4:7], s[0:1], 0")
    g("s_load_dwordx2 s[8:9], s[0:1], 16")
    g("s_load_dwordx8 s[12:19], s[0:1], 32")
    g("s_load_dwordx4 s[20:23], s[0:1], 64")
    g.c("pull the code into L2 (512 lanes x 128 B); result unused")
    g(f"s_getpc_b64 s[{sT1}:{sT2}]\nv_lshlrev_b32 v2, 7, v0")
    g(f"global_load_dword v255, v2, s[{sT1}:{sT2}]")
    g("v_lshrrev_b32 v1, 6, v0\nv_and_b32 v0, 63, v0")
    g(f"s_and_b32 s{sT0}, s2, 7\ns_lshr_b32 s{sT1}, s2, 3")
    g(f"v_readfirstlane_b32 s{sWAVE}, v1")
    if g.o.get("xmap", 3) == 3:
        g(f"s_and_b32 s{sRB}, s{sT0}, 1\ns_lshl_b32 s{sRB}, s{sRB}, 2\ns_and_b32 s{sT2}, s{sT1}, 3\ns_add_u32 s{sRB}, s{sRB}, s{sT2}")
        g(f"s_and_b32 s{sT3}, s{sT1}, 8\ns_add_u32 s{sRB}, s{sRB}, s{sT3}")
        g(f"s_and_b32 s{sCS}, s{sT0}, 6\ns_bfe_u32 s{sT3}, s{sT1}, 0x10002\ns_add_u32 s{sCS}, s{sCS}, s{sT3}")
        g(f"s_lshr_b32 s{sT3}, s{sT1}, 4\ns_lshl_b32 s{sT3}, s{sT3}, 3\ns_add_u32 s{sCS}, s{sCS}, s{sT3}")
        g(f"s_lshl_b32 s{sRT}, s{sT0}, 2\ns_add_u32 s{sRT}, s{sRT}, s{sT2}\ns_lshr_b32 s{sCT}, s{sT1}, 2")
    elif g.o.get("xmap") == 4:
        g(f"s_and_b32 s{sCS}, s{sT0}, 1\ns_lshl_b32 s{sCS}, s{sCS}, 2\ns_and_b32 s{sT2}, s{sT1}, 3\ns_add_u32 s{sCS}, s{sCS}, s{sT2}")
        g(f"s_lshr_b32 s{sT3}, s{sT1}, 4\ns_lshl_b32 s{sT3}, s{sT3}, 3\ns_add_u32 s{sCS}, s{sCS}, s{sT3}")
        g(f"s_and_b32 s{sRB}, s{sT0}, 6\ns_bfe_u32 s{sT3}, s{sT1}, 0x10002\ns_add_u32 s{sRB}, s{sRB}, s{sT3}")
        g(f"s_and_b32 s{sT3}, s{sT1}, 8\ns_add_u32 s{sRB}, s{sRB}, s{sT3}")
        g(f"s_lshl_b32 s{sRT}, s{sT0}, 2\ns_add_u32 s{sRT}, s{sRT}, s{sT2}\ns_lshr_b32 s{sCT}, s{sT1}, 2")
    else:
        g(f"s_and_b32 s{sRB}, s{sT1}, 1\ns_lshl_b32 s{sRB}, s{sRB}, 3\ns_add_u32 s{sRB}, s{sRB}, s{sT0}\ns_lshr_b32 s{sCS}, s{sT1}, 1")
        g(f"s_and_b32 s{sT2}, s{sCS}, 1\ns_lshl_b32 s{sRT}, s{sRB}, 1\ns_add_u32 s{sRT}, s{sRT}, s{sT2}\ns_lshr_b32 s{sCT}, s{sT1}, 2")
    g(f"s_add_u32 s{sROT}, s{sRB}, s{sCS}\ns_and_b32 s{sROT}, s{sROT}, 7")
    g(f"s_and_b32 s{sJ}, s{sWAVE}, 3\ns_mov_b32 s{sJH+0}, 0")
    g(f"s_lshl_b32 s{sJ2K}, s{sJ}, 11\ns_lshl_b32 s{sJ4K}, s{sJ}, 12\ns_lshl_b32 s{sJH}, s{sJ}, 9")
    g(f"s_add_u32 s{sSTG}, s{sJ4K}, {STG}")
    g(f"s_and_b32 s{sCLS}, s{sROT}, 1\ns_lshl_b32 s{sCLS}, s{sCLS}, 1\ns_lshr_b32 s{sT3}, s{sRB}, 3\ns_add_u32 s{sCLS}, s{sCLS}, s{sT3}")
    for n, sz in ((SX, 2048*1024), (SQ, 512*3072), (SG, 512*3584), (SU, 512*3584), (SD, 1792*1024), (SO, 512*1024),
                  (SW, 256 << 20), (SOUT, 2048*1024), (SDBG, 256)):
        g(f"s_mov_b32 s{n+2}, {sz}\ns_mov_b32 s{n+3}, 0x20000")
    g("s_waitcnt lgkmcnt(0)")
    for n, p in ((SX, 4), (SQ, 6), (SO, 8), (SG, 12), (SU, 14), (SD, 16), (SOUT, 18), (SDBG, 20), (SW, 22)):
        g(f"s_mov_b32 s{n}, s{p}\ns_mov_b32 s{n+1}, s{p+1}")
    g.stamp(0)
    flag_addr(g) if False else None
    g(f"s_cmp_lt_u32 s{sWAVE}, 4\ns_cbranch_scc1 L_C")


def kappa_offsets(g):
    flag_addr(g)
    rm = g.o.get("rr", "both")
    if rm == "both": g(f"s_add_u32 s{sRR}, s{sRT}, s{sCT}")
    elif rm == "rt": g(f"s_mov_b32 s{sRR}, s{sRT}")
    elif rm == "ct": g(f"s_mov_b32 s{sRR}, s{sCT}")
    else: g(f"s_mov_b32 s{sRR}, 0")
    g(f"s_mul_i32 s{sT0}, s{sRR}, 52\ns_lshr_b32 s{sT0}, s{sT0}, 8\ns_mul_i32 s{sT0}, s{sT0}, 5\ns_sub_u32 s{sT0}, s{sRR}, s{sT0}")
    g(f"s_mul_i32 s{sT1}, s{sWAVE}, 5\ns_add_u32 s{sT1}, s{sT1}, 16")
    g(f"s_lshl_b32 s{sT3}, s{sCT}, 7")
    for i in range(5):
        g(f"s_add_u32 s{sT2}, s{sT0}, {i}\ns_cmp_ge_u32 s{sT2}, 5\ns_cselect_b32 s{sKB+i}, 5, 0\ns_sub_u32 s{sT2}, s{sT2}, s{sKB+i}")
        g(f"s_add_u32 s{sT2}, s{sT2}, s{sT1}\ns_lshl_b32 s{sT2}, s{sT2}, 15\ns_add_u32 s{sKB+i}, s{sT2}, s{sT3}")
    g(f"s_and_b32 s{sT0}, s{sRR}, 1\ns_lshl_b32 s{sT1}, s{sWAVE}, 1")
    for i in range(2):
        g(f"s_xor_b32 s{sT2}, s{sT0}, {i}\ns_add_u32 s{sT2}, s{sT2}, s{sT1}\ns_lshl_b32 s{sT2}, s{sT2}, 15\ns_add_u32 s{sKB+5+i}, s{sT2}, s{sT3}")
        g(f"s_mov_b32 s{sKB+7+i}, s{sKB+5+i}")

def w2srd(i): return srd(SD) if i < 7 else srd(SO)


def stats_slot(g, sdst):
    g(f"s_lshl_b32 s{sdst}, s{sRB}, 12\ns_lshr_b32 s{sT3}, s{sROT}, 1\ns_lshl_b32 s{sT3}, s{sT3}, 10\ns_add_u32 s{sdst}, s{sdst}, s{sT3}")
    g(f"s_and_b32 s{sT3}, s{sROT}, 1\ns_lshl_b32 s{sT3}, s{sT3}, 9\ns_add_u32 s{sdst}, s{sdst}, s{sT3}")
    g(f"s_lshr_b32 s{sT3}, s{sCS}, 3\ns_lshl_b32 s{sT3}, s{sT3}, 8\ns_add_u32 s{sdst}, s{sdst}, s{sT3}\ns_add_u32 s{sdst}, s{sdst}, {STATS}")

def cols_panel(g, sdst):
    g(f"s_add_u32 s{sdst}, s{sCLS}, 1\ns_cmp_eq_u32 s{sCLS}, 0\ns_cselect_b32 s{sdst}, 0, s{sdst}")

def cols_slot(g, sdst):
    cols_panel(g, sdst)
    g(f"s_lshl_b32 s{sdst}, s{sdst}, 8")
    g(f"s_lshr_b32 s{sT3}, s{sROT}, 1\ns_mul_i32 s{sT3}, s{sT3}, 1280\ns_add_u32 s{sdst}, s{sdst}, s{sT3}")
    g(f"s_lshl_b32 s{sT3}, s{sCS}, 13\ns_add_u32 s{sdst}, s{sdst}, s{sT3}\ns_add_u32 s{sdst}, s{sdst}, {COLS}")


ACC, XF, WF = 0, 160, 192
vWA, vXA, vLANE = 224, 228, 230
MO, MP, MP0 = 236, 240, 244
def accr(p, tl, t): return ACC + ((p*2+tl)*4+t)*4


def c_setup(g):
    g.c("C wave setup")
    if g.o.get("t0"):
        g("v_lshlrev_b32 v246, 7, v0")
        for w, (sr, n) in enumerate(((SX, 64), (SQ, 48), (SG, 56), (SU, 56))):
            g(f"s_cmp_lg_u32 s{sWAVE}, {w}\ns_cbranch_scc1 L_t0_{w}")
            g(f"s_mul_i32 s{sT0}, s2, {n*128}")
            if n < 64: g(f"s_mov_b32 exec_hi, {(1 << (n-32)) - 1}")
            g(f"buffer_load_dword v247, v246, {srd(sr)}, s{sT0} offen\ns_mov_b64 exec, -1")
            g.lab(f"L_t0_{w}")
    g(f"s_cmp_lg_u32 s{sWAVE}, 0\ns_cbranch_scc1 L_c_noclr")
    g("v_mov_b32 v248, -1\nv_mov_b32 v249, -1\nv_mov_b32 v250, 0\nv_lshlrev_b32 v251, 2, v0\nv_lshlrev_b32 v252, 3, v0")
    stats_slot(g, sT2)
    g("s_mov_b32 exec_hi, 0")
    g(f"buffer_store_dwordx2 v[248:249], v252, {srd(SW)}, s{sT2} offen sc1")
    g("s_mov_b64 exec, -1")
    cols_slot(g, sT2)
    g(f"buffer_store_dword v248, v251, {srd(SW)}, s{sT2} offen sc1")
    g(f"s_cmp_lg_u32 s{sCLS}, 0\ns_cbranch_scc1 L_c_clr1")
    g(f"buffer_store_dword v248, v251, {srd(SW)}, s{sT2} offen offset:256 sc1")
    g.lab("L_c_clr1")
    g(f"s_lshl_b32 s{sT2}, s{sRB}, 4\ns_add_u32 s{sT2}, s{sT2}, s{sCS}\ns_lshl_b32 s{sT2}, s{sT2}, 7\ns_add_u32 s{sT2}, s{sT2}, {FLAGS}")
    g("s_mov_b64 exec, 15")
    g(f"buffer_store_dword v250, v251, {srd(SW)}, s{sT2} offen sc1")
    g("s_mov_b64 exec, -1")
    g.lab("L_c_noclr")
    g(f"s_and_b32 s{sT0}, s{sWAVE}, 1\ns_lshl_b32 s{sT0}, s{sT0}, 1")
    g(f"s_lshr_b32 s{sT1}, s{sWAVE}, 1\ns_lshl_b32 s{sT1}, s{sT1}, 13\ns_add_u32 s{sT1}, s{sT1}, {XR[0]}")
    g("v_lshrrev_b32 v4, 4, v0\nv_bfe_u32 v5, v0, 2, 2\nv_and_b32 v6, 3, v0")
    g("v_lshl_add_u32 v7, v4, 3, v5\nv_lshlrev_b32 v7, 7, v7\nv_lshl_add_u32 v7, v6, 3, v7")
    g("v_lshrrev_b32 v14, 1, v5\nv_and_b32 v15, 1, v4\nv_lshl_add_u32 v14, v15, 1, v14")
    g(f"v_xor_b32 v14, s{sT0}, v14")
    g(f"v_lshl_add_u32 v{vWA}, v14, 5, v7\nv_xor_b32 v14, 1, v14\nv_lshl_add_u32 v{vWA+1}, v14, 5, v7")
    g(f"v_add_u32 v{vWA+2}, {WR[1]}, v{vWA}\nv_add_u32 v{vWA+3}, {WR[1]}, v{vWA+1}")
    g("v_and_b32 v5, 15, v0\nv_lshrrev_b32 v6, 1, v5\nv_xor_b32 v6, v6, v4")
    g(f"v_lshl_add_u32 v7, v5, 7, s{sT1}")
    g(f"v_lshl_add_u32 v{vXA}, v6, 4, v7\nv_xor_b32 v6, 4, v6\nv_lshl_add_u32 v{vXA+1}, v6, 4, v7")
    g(f"v_mov_b32 v{vLANE}, v0")
    kappa_offsets(g)
    g("v_lshlrev_b32 v8, 2, v4\nv_sub_u32 v8, v5, v8\nv_mov_b32 v9, 0xff800000\nv_mov_b32 v10, 0")
    for r in range(4):
        g(f"v_subrev_u32 v11, {r}, v8")
        g(f"v_cmp_gt_u32 vcc, 8, v11\nv_add_u32 v11, 8, v11\ns_nop 0\nv_cndmask_b32 v{MO+r}, v9, v10, vcc")
        g(f"v_cmp_gt_i32 vcc, 0, v11\ns_nop 1\nv_cndmask_b32 v{MP+r}, v9, v10, vcc")
    g(f"s_lshr_b32 s{sT2}, s{sWAVE}, 1\ns_or_b32 s{sT2}, s{sRB}, s{sT2}\ns_cmp_eq_u32 s{sT2}, 0\ns_cselect_b64 vcc, -1, 0")
    for r in range(4): g(f"v_cndmask_b32 v{MP0+r}, v{MP+r}, v9, vcc")
    for r in range(ACC, ACC+160): g(f"v_mov_b32 v{r}, 0")
    g(f"s_cmp_lg_u32 s{sWAVE}, 0\ns_cbranch_scc1 L_c_nocnt")
    g(f"v_mov_b32 v253, 1\nv_mov_b32 v254, 0\ns_and_b32 s{sT2}, s2, 1\ns_lshl_b32 s{sT2}, s{sT2}, 7")
    g("s_mov_b64 exec, 1")
    g("s_waitcnt vmcnt(0)")
    g(f"buffer_atomic_add v253, v254, {srd(SDBG)}, s{sT2} offen sc1")
    g("s_mov_b64 exec, -1")
    g.lab("L_c_nocnt")
    h_offsets(g, eT, vLANE, 232)


def c_wrd(par, p, slot):
    b = WF + 16*slot
    return [f"ds_read_b64_tr_b16 {v(b+tl*8+j*4+h*2,2)}, v{vWA+2*par+tl} offset:{poff(par, p) - WR[par] + j*4096 + h*512}"
            for tl in range(2) for j in range(2) for h in range(2)]

def c_xrd(par, t):
    return [f"ds_read_b128 {v(XF+t*8+j*4,4)}, v{vXA+j} offset:{par*16384 + t*2048}" for j in range(2)]


def c_kloop(g, typ):
    L = f"L_ck{typ}"
    g("s_barrier")
    g.stamp(1)
    w = c_wrd(0, 0, 0)
    for l in w[:4]: g(l)
    for l in c_xrd(0, 0): g(l)
    for l in w[4:]: g(l)
    for t in range(1, 4):
        for l in c_xrd(0, t): g(l)
    g(f"s_mov_b32 s{sLOOP}, 0")
    g.align(3)
    g.lab(L)
    gp = 0
    for par in range(2):
        for p in range(5):
            slot = gp % 2
            nx = c_wrd(par, p+1, 1-slot) if p < 4 else c_wrd(1-par, 0, 1-slot)
            g("s_waitcnt lgkmcnt(6)" if p == 0 else "s_waitcnt lgkmcnt(0)")
            if p in (1, 4): g("s_barrier")
            if par == 1 and p == 4: g(f"s_cmp_eq_u32 s{sLOOP}, 3\ns_cbranch_scc1 {L}_last")
            b = WF + 16*slot
            ri = 0
            swap = (typ == "A" and p == 1)
            for t in range(4):
                if p == 0 and t > 0:
                    g(f"s_waitcnt lgkmcnt({6-2*t + ri})")
                for tl in range(2):
                    for j in range(2):
                        wf, xf = b+tl*8+j*4, XF+t*8+j*4
                        if swap: mfma(g, accr(p, tl, t), xf, wf)
                        else: mfma(g, accr(p, tl, t), wf, xf)
                        if ri < 8:
                            g(nx[ri]); ri += 1
                if p == 4:
                    for l in c_xrd(1-par, t): g(l)
            gp += 1
    g(f"s_add_u32 s{sLOOP}, s{sLOOP}, 1\ns_branch {L}")
    g.align(3)
    g.lab(L + "_last")
    for t in range(4):
        for tl in range(2):
            for j in range(2): mfma(g, accr(4, tl, t), WF+16+tl*8+j*4, XF+t*8+j*4)
    g.stamp(2)


def ffn_pair(g, ga, ua, csg, csu, mr, dst):
    pkfma_negb(g, ga, csg, mr); pkfma_negb(g, ga+2, csg+2, mr)
    pkfma_negb(g, ua, csu, mr); pkfma_negb(g, ua+2, csu+2, mr)
    for k in range(4): g(f"v_max_f32 v{ga+k}, 0, v{ga+k}")
    pkmul_b(g, ua, mr, 1); pkmul_b(g, ua+2, mr, 1)
    pkmul(g, ga, ua); pkmul(g, ga+2, ua+2)
    cvt(g, dst, ga); cvt(g, dst+1, ga+2)


MR = 160
eO, eI, eG, eS, eR, eC, eL = 231, 232, 233, 234, 235, 228, 229
eT = 248
def h_offsets(g, dst, lane, t0):
    if not g.o.get("skip3", 1):
        for t in range(4): g(f"v_lshlrev_b32 v{dst+t}, 4, v{lane}\nv_add_u32 v{dst+t}, {t*1024}, v{dst+t}")
        return
    g(f"v_lshrrev_b32 v{t0}, 3, v{lane}\nv_and_b32 v{t0+1}, 7, v{lane}\nv_lshlrev_b32 v{t0+1}, 4, v{t0+1}")
    for t in range(4):
        g(f"v_add_u32 v{t0+2}, {8*t}, v{t0}\nv_mul_u32_u24 v{t0+3}, 37, v{t0+2}\nv_lshrrev_b32 v{t0+3}, 8, v{t0+3}")
        g(f"v_add_u32 v{t0+2}, v{t0+2}, v{t0+3}\nv_and_b32 v{t0+3}, 7, v{t0+2}")
        g(f"v_cmp_lt_u32 vcc, 2, v{t0+3}\ns_nop 1\nv_addc_co_u32 v{t0+2}, vcc, 0, v{t0+2}, vcc")
        g(f"v_lshl_add_u32 v{dst+t}, v{t0+2}, 7, v{t0+1}")


def c_epi_common(g):
    g(f"v_and_b32 v{eI}, 15, v{vLANE}\nv_lshrrev_b32 v{eG}, 4, v{vLANE}")
    g(f"s_lshr_b32 s{sT0}, s{sWAVE}, 1\ns_and_b32 s{sT1}, s{sWAVE}, 1")
    g(f"s_lshl_b32 s{sT2}, s{sT0}, 8\ns_add_u32 s{sT2}, s{sT2}, {MEAN}")
    g(f"v_lshl_add_u32 v{eS}, v{eI}, 2, s{sT2}")
    g(f"v_lshl_add_u32 v{eR}, v{eG}, 4, s{sT2}")
    g(f"s_lshl_b32 s{sT2}, s{sT1}, 7\ns_add_u32 s{sT2}, s{sT2}, {CSUM}")
    g(f"v_lshl_add_u32 v{eC}, v{eG}, 4, s{sT2}")
    g(f"v_lshl_add_u32 v{eL}, v{eI}, 2, s{sT2}")
    for t in range(4):
        g(f"ds_read2_b32 {v(MR+2*t,2)}, v{eS} offset0:{t*16} offset1:{t*16 + (RSTD-MEAN)//4}")
    g(f"v_lshlrev_b32 v{eO}, 4, v{vLANE}")
    g(f"s_lshl_b32 s{sHB}, s{sRB}, 1\ns_add_u32 s{sHB}, s{sHB}, s{sT0}\ns_mul_i32 s{sHB}, s{sHB}, {72*KP}")


def c_flag(g):
    g.c("fetch the preloaded W2 fragments while the stores drain, then publish this wave's flag")
    g.hstamp("e")
    A = 240
    w2_pattern(g, A, vLANE, sJ4K, 236)
    for n in range(4): g(f"v_add_u32 v{A+4+n}, 0x10000, v{A+n}")
    def rd(i, off): w2_far(g, i, A, A+4, off)
    for i in range(5): rd(i, SLOT[CSLOT[i]])
    g(f"s_mov_b32 s{sN6}, 0")
    g(f"s_lshl_b32 s{sT2}, s{sRB}, 4\ns_add_u32 s{sT2}, s{sT2}, s{sCS}\ns_lshl_b32 s{sT2}, s{sT2}, 7\ns_lshl_b32 s{sT3}, s{sWAVE}, 2")
    g(f"s_add_u32 s{sT2}, s{sT2}, s{sT3}\ns_add_u32 s{sT2}, s{sT2}, {FLAGS}")
    g("v_mov_b32 v238, 1\nv_mov_b32 v239, 0")
    for k in range(4): g(f"s_add_u32 s{sPS+k}, s{sJ4K}, {SLOT[PC[k]]}")
    g(f"v_lshrrev_b32 v232, 3, v{vLANE}\nv_and_b32 v233, 7, v{vLANE}\nv_bfe_u32 v234, v232, 1, 2\nv_lshlrev_b32 v234, 1, v234\nv_xor_b32 v234, v234, v233")
    g(f"v_lshlrev_b32 v232, 10, v232\nv_lshl_add_u32 v252, v234, 4, v232\nv_mov_b32 v253, v{vLANE}")
    g("s_waitcnt vmcnt(0)")
    g("s_mov_b64 exec, 1")
    g(f"buffer_store_dword v238, v239, {srd(SW)}, s{sT2} offen {g.o.get('flf','sc1')}")
    g("s_mov_b64 exec, -1")
    g.stamp(3)
    g("s_waitcnt lgkmcnt(0)")
    g(f"s_cmp_lt_u32 s{sCS}, 8\ns_cbranch_scc1 L_P2")
    g("s_barrier")


def c_epi_B(g):
    g.c("type B epilogue: panels G0,U0,G1,U1,M")
    c_epi_common(g)
    CS = 168
    for p in range(5):
        for tl in range(2):
            g(f"ds_read_b128 {v(CS+(p*2+tl)*4,4)}, v{eC} offset:{p*256 + tl*64}")
    g(f"s_and_b32 s{sT2}, s{sCS}, 7\ns_mul_i32 s{sT2}, s{sT2}, 5\ns_add_u32 s{sT2}, s{sT2}, 16")
    g(f"s_and_b32 s{sT3}, s{sCS}, 1")
    g(f"s_add_u32 s{sXB}, s{sT2}, s{sT3}\ns_add_u32 s{sXB}, s{sXB}, s{sT1}\ns_mul_i32 s{sXB}, s{sXB}, {KP}\ns_add_u32 s{sXB}, s{sXB}, s{sHB}")
    g(f"s_xor_b32 s{sT3}, s{sT3}, 1\ns_lshl_b32 s{sT3}, s{sT3}, 2\ns_add_u32 s{sQB}, s{sT2}, s{sT3}\ns_mul_i32 s{sQB}, s{sQB}, {KP}\ns_add_u32 s{sQB}, s{sQB}, s{sHB}")
    g(f"s_cmp_eq_u32 s{sT1}, 1\ns_cselect_b64 vcc, -1, 0")
    g(f"v_cndmask_b32 v226, v{eT}, v{eT+2}, vcc\nv_cndmask_b32 v227, v{eT+1}, v{eT+3}, vcc")
    g(f"s_add_u32 s{sGB}, s{sXB}, {2*KP}")
    g(f"s_lshl_b32 s{sT2}, s{sT0}, 12\ns_add_u32 s{sT2}, s{sT2}, {EX}\ns_lshl_b32 s{sT3}, s{sT1}, 3")
    g(f"v_add_u32 v224, s{sT2}, v231\ns_lshl_b32 s{sT2}, s{sT1}, 11")
    g(f"v_add_u32 v225, s{sT2}, v224\nv_add_u32 v224, s{sT3}, v224")
    g("s_waitcnt lgkmcnt(0)")
    g.hstamp("a1")
    g.align(3)
    for t in range(4): g(f"v_mul_f32 v{MR+2*t+1}, v{MR+2*t+1}, v{MR+2*t+1}")
    for t in range(4):
        ffn_pair(g, accr(4, 0, t), accr(4, 1, t), CS+32, CS+36, MR+2*t, 216+2*t)
        g(f"ds_write_b64 v224, {v(216+2*t,2)} offset:{t*1024}")
    g.hstamp("a2")
    n = 0
    for f in range(2):
        for t in range(4):
            d = 208 + 4*(n % 2); n += 1
            for tl in range(2):
                ffn_pair(g, accr(2*f, tl, t), accr(2*f+1, tl, t), CS+((2*f)*2+tl)*4, CS+((2*f+1)*2+tl)*4, MR+2*t, d+2*tl)
            g(f"buffer_store_dwordx4 {v(d,4)}, v{eT+t}, {srd(SW)}, s{sXB if f == 0 else sGB} offen {g.o.get('stf','sc1')}")
            if f == 0 and t == 1:
                g.hstamp("a3")
                g("s_waitcnt lgkmcnt(0)\ns_barrier")
                g.hstamp("a4")
                for k in range(2): g(f"ds_read_b128 {v(216+4*k,4)}, v225 offset:{k*1024}")
            if f == 0 and t == 3:
                g("s_waitcnt lgkmcnt(0)")
                for k in range(2):
                    g(f"buffer_store_dwordx4 {v(216+4*k,4)}, v{226+k}, {srd(SW)}, s{sQB} offen {g.o.get('stf','sc1')}")


def c_epi_A(g):
    g.c("type A epilogue: panels K,V(swapped),Q,G,U")
    c_epi_common(g)
    CS = 168
    CV = 200
    RV = {2: 184, 3: 192, 0: 184, 1: 192}
    RC, ONE = 232, 252
    VP = lambda hh, par: 204 + (hh*2+par)*6
    Kp = lambda hh, t: accr(0, hh, t)
    Qp = lambda hh, t: accr(2, hh, t)
    g(f"ds_read2_b32 {v(CV,2)}, v{eL} offset0:64 offset1:80")
    def rowstats(t):
        g(f"ds_read_b128 {v(RV[t],4)}, v{eR} offset:{t*64}")
        g(f"ds_read_b128 {v(RV[t]+4,4)}, v{eR} offset:{t*64 + RSTD - MEAN}")
    rowstats(2); rowstats(3)
    for k, p in ((0, 0), (1, 2)):
        for tl in range(2):
            g(f"ds_read_b128 {v(CS+(k*2+tl)*4,4)}, v{eC} offset:{p*256 + tl*64}")
    g(f"v_and_b32 v202, 7, v{eI}\nv_lshl_add_u32 v202, v{eG}, 3, v202\nv_lshlrev_b32 v202, 3, v202")
    g(f"v_and_b32 v203, 1, v{eG}\nv_lshl_add_u32 v203, v203, 4, v{eI}\nv_lshlrev_b32 v203, 3, v203")
    g(f"s_lshl_b32 s{sT2}, s{sT1}, 11\ns_add_u32 s{sT2}, s{sT2}, {EX}")
    g(f"v_add_u32 v202, s{sT2}, v202\nv_add_u32 v203, s{sT2}, v203")
    for r in range(4): g(f"v_mov_b32 v{ONE+r}, 0x3f803f80")
    g(f"s_lshl_b32 s{sT2}, s{sCS}, 1\ns_add_u32 s{sT2}, s{sT2}, s{sT1}\ns_mul_i32 s{sT2}, s{sT2}, {KP}\ns_add_u32 s{sXB}, s{sT2}, s{sHB}")
    g(f"s_add_u32 s{sQB}, s{sXB}, {56*KP}")
    def fix_tok(a, cs, t, sc, hi):
        pkfma_negb(g, a, cs, MR+2*t); pkfma_negb(g, a+2, cs+2, MR+2*t)
        pkmul_b(g, a, sc, hi); pkmul_b(g, a+2, sc, hi)
        cvt(g, a, a); cvt(g, a+1, a+2)
    def fix_row(hh, t):
        a = accr(1, hh, t); dst = VP(hh, t & 1) + 2 + 2*(t >> 1)
        pkfma_negb(g, a, RV[t], CV, hh); pkfma_negb(g, a+2, RV[t]+2, CV, hh)
        pkmul(g, a, RV[t]+4); pkmul(g, a+2, RV[t]+6)
        cvt(g, dst, a); cvt(g, dst+1, a+2)
    g("s_waitcnt lgkmcnt(4)")
    for t in (2, 3):
        for hh in range(2): fix_row(hh, t)
    rowstats(0); rowstats(1)
    g("s_waitcnt lgkmcnt(4)")
    for t in (2, 3):
        for hh in range(2): fix_tok(Kp(hh, t), CS+hh*4, t, MR+2*t, 1)
    g(f"s_cmp_ge_u32 s{sWAVE}, 2\ns_cbranch_scc1 L_a_noexp")
    g("s_mov_b32 exec_lo, 0xff00ff00\ns_mov_b32 exec_hi, 0xff00ff00")
    for hh in range(2):
        for par in range(2):
            g(f"ds_write_b64 v202, {v(Kp(hh, 2+par),2)} offset:{4096 + hh*1024 + par*512}")
    g("s_mov_b32 exec_lo, 0\ns_mov_b32 exec_hi, -1")
    for hh in range(2):
        for par in range(2):
            g(f"ds_write_b64 v203, {v(VP(hh,par)+4,2)} offset:{4096 + hh*1024 + par*512 + 256}")
    g("s_mov_b64 exec, -1")
    g.lab("L_a_noexp")
    g(f"s_lshl_b32 s{sT2}, s{sT0}, 12")
    g(f"v_add_u32 v202, s{sT2}, v202\nv_add_u32 v203, s{sT2}, v203")
    for t in range(4): g(f"v_mul_f32 v{RC+t}, 0x3eb8aa3b, v{MR+2*t+1}")
    for t in (0, 1):
        for hh in range(2): fix_tok(Kp(hh, t), CS+hh*4, t, MR+2*t, 1)
    g("s_waitcnt lgkmcnt(0)")
    for t in (0, 1):
        for hh in range(2): fix_row(hh, t)
    for k, p in ((2, 3), (3, 4)):
        for tl in range(2):
            g(f"ds_read_b128 {v(CS+(k*2+tl)*4,4)}, v{eC} offset:{p*256 + tl*64}")
    for t in (2, 3, 0, 1):
        for hh in range(2): fix_tok(Qp(hh, t), CS+8+hh*4, t, RC + (t & 2), t & 1)
    EK = 184
    units = {1: [(hh, t) for t in (2, 3) for hh in range(2)], 0: [(hh, t) for t in (0, 1) for hh in range(2)]}
    S = lambda b, u: (32 if b else 96) + 8*u
    Mx = lambda b, u: 128 + 8*b + 2*u
    P = lambda b, u: (144 if b else 168) + 4*u
    def m1(b):
        out = []
        for u, (hh, t) in enumerate(units[b]):
            kp = EK + (hh*2+t)*2 if t < 2 else Kp(hh, t-2)
            mp = MP0 if t < 2 else MP
            out.append(f"v_mfma_f32_16x16x16_bf16 {v(S(b,u),4)}, {v(kp,2)}, {v(Qp(hh,t),2)}, {v(mp,4)}")
            out.append(f"v_mfma_f32_16x16x16_bf16 {v(S(b,u)+4,4)}, {v(Kp(hh,t),2)}, {v(Qp(hh,t),2)}, {v(MO,4)}")
        return out
    def m2(b):
        out = []
        for u, (hh, t) in enumerate(units[b]):
            out.append(f"v_mfma_f32_16x16x32_bf16 {v(S(b,u),4)}, {v(VP(hh, t & 1) + 2*(t >> 1),4)}, {v(P(b,u),4)}, 0")
            out.append(f"v_mfma_f32_16x16x32_bf16 {v(S(b,u)+4,4)}, {v(ONE,4)}, {v(P(b,u),4)}, 0")
        return out
    def v1(b, mm):
        for u in range(4): g(f"v_max3_f32 v{Mx(b,u)}, v{S(b,u)}, v{S(b,u)+1}, v{S(b,u)+2}")
        for u in range(4): g(f"v_max3_f32 v{Mx(b,u)+1}, v{S(b,u)+3}, v{S(b,u)+4}, v{S(b,u)+5}")
        for u in range(4): g(f"v_max3_f32 v{Mx(b,u)}, v{Mx(b,u)}, v{S(b,u)+6}, v{S(b,u)+7}")
        for u in range(4): g(f"v_max_f32 v{Mx(b,u)}, v{Mx(b,u)}, v{Mx(b,u)+1}")
        for sw in ("v_permlane32_swap_b32", "v_permlane16_swap_b32"):
            for u in range(4): g(f"v_mov_b32 v{Mx(b,u)+1}, v{Mx(b,u)}")
            g("s_nop 0")
            for u in range(4): g(f"{sw} v{Mx(b,u)}, v{Mx(b,u)+1}")
            for u in range(4): g(f"v_max_f32 v{Mx(b,u)}, v{Mx(b,u)}, v{Mx(b,u)+1}")
        for u in range(4):
            for k in range(4):
                g(f"v_pk_add_f32 {v(S(b,u)+2*k,2)}, {v(S(b,u)+2*k,2)}, {v(Mx(b,u),2)} op_sel_hi:[1,0] neg_lo:[0,1] neg_hi:[0,1]")
        n = 0
        for u in range(4):
            for k in range(8):
                g(f"v_exp_f32 v{S(b,u)+k}, v{S(b,u)+k}")
                if n % 3 == 0 and mm: g(mm.pop(0))
                n += 1
        assert not mm
        for u in range(4):
            for k in range(4): cvt(g, P(b,u)+k, S(b,u)+2*k)
    def v2(b):
        for u in range(4): g(f"v_rcp_f32 v{Mx(b,u)}, v{S(b,u)+4}")
        g("s_nop 0")
        for u in range(4):
            pkmul_b(g, S(b,u), Mx(b,u)); pkmul_b(g, S(b,u)+2, Mx(b,u))
        for u, (hh, t) in enumerate(units[b]):
            d = 192 + 4*(u >> 1) + 2*hh
            cvt(g, d, S(b,u)); cvt(g, d+1, S(b,u)+2)
            if hh == 1:
                g(f"buffer_store_dwordx4 {v(d-2,4)}, v{eT+t}, {srd(SW)}, s{sQB} offen {g.o.get('stf','sc1')}")
    g.hstamp("a1")
    for t in range(4): g(f"v_mul_f32 v{MR+2*t+1}, v{MR+2*t+1}, v{MR+2*t+1}")
    for l in m1(1): g(l)
    g("s_waitcnt lgkmcnt(0)")
    for t in range(4):
        d = 168 + 4*(t % 2)
        for tl in range(2):
            ffn_pair(g, accr(3, tl, t), accr(4, tl, t), CS+16+tl*4, CS+24+tl*4, MR+2*t, d+2*tl)
        g(f"buffer_store_dwordx4 {v(d,4)}, v{eT+t}, {srd(SW)}, s{sXB} offen {g.o.get('stf','sc1')}")
    g.hstamp("a2")
    g("s_barrier")
    for hh in range(2):
        for par in range(2):
            g(f"ds_read_b64 {v(EK+(hh*2+par)*2,2)}, v202 offset:{hh*1024 + par*512}")
            g(f"ds_read_b64 {v(VP(hh,par),2)}, v203 offset:{hh*1024 + par*512 + 256}")
    mm = m1(0); mm[0] = "s_waitcnt lgkmcnt(0)\n" + mm[0]
    v1(1, mm)
    g.hstamp("a3")
    v1(0, m2(1))
    g.hstamp("a4")
    g("s_nop 0")
    for l in m2(0): g(l)
    v2(1)
    v2(0)


W2F, HS, NHS, vHO = 64, 208, 10, 248
def w2_pattern(g, dst, lane, base_sgpr, t0):
    g(f"v_lshrrev_b32 v{t0}, 2, v{lane}\nv_and_b32 v{t0+1}, 3, v{lane}")
    g(f"v_lshlrev_b32 v{t0+2}, 7, v{t0}\nv_lshl_add_u32 v{t0+2}, v{t0+1}, 3, v{t0+2}\nv_add_u32 v{t0+2}, s{base_sgpr}, v{t0+2}")
    g(f"v_bfe_u32 v{t0}, v{t0}, 1, 2")
    for n in range(4):
        g(f"v_xor_b32 v{t0+1}, {n}, v{t0}\nv_lshl_add_u32 v{dst+n}, v{t0+1}, 5, v{t0+2}")

def w2_far(g, i, a0, a1, off):
    if off < 0x10000 - 4096: ls = w2_reads(i, a0, off)
    elif off < 0x20000 - 4096: ls = w2_reads(i, a1, off - 0x10000)
    else:
        for n in range(4): g(f"v_add_u32 v{a1+n}, 0x10000, v{a1+n}")
        ls = w2_reads(i, a1, off - 0x20000)
    for l in ls: g(l)


def w2_reads(i, areg, off):
    return [f"ds_read_b64_tr_b16 {v(W2F+(i*4+n)*4+2*h,2)}, v{areg+n} offset:{off + h*2048}" for n in range(4) for h in range(2)]


hX, hXH, hQ, hG, hM, hW2, hA2, hHW, hHX, hCA, hSA, hLANE = 208, 212, 213, 215, 217, 219, 220, 224, 226, 228, 232, 233

class HQ:
    def __init__(self, g): self.g = g; self.q = []
    def op(self, tag): self.q.append(tag)
    def younger(self, tags):
        idx = max(i for i, t in enumerate(self.q) if t in tags)
        return len(self.q) - 1 - idx
    def mark(self): return len(self.q)
    def since(self, m): return len(self.q) - m


def dma(g, q, tag, vo, sr, so, m0base, m0const, fill="s_nop 0"):
    g(f"s_add_u32 m0, s{m0base}, {m0const}")
    g(fill)
    g(f"buffer_load_dwordx4 v{vo}, {sr}, s{so} offen lds")
    q.op(tag)


def h_setup(g, typ):
    g.c(f"H wave setup type {typ}")
    if g.o.get("hprio", 1): g("s_setprio 1")
    g("v_lshrrev_b32 v1, 3, v0\nv_and_b32 v2, 7, v0\nv_lshrrev_b32 v3, 1, v1")
    g(f"s_lshl_b32 s{sT0}, s{sJ}, 15")
    g(f"v_xor_b32 v4, v2, v3\nv_lshlrev_b32 v5, 11, v1\nv_add_u32 v5, s{sT0}, v5")
    g(f"v_lshl_add_u32 v{hX}, v4, 4, v5\nv_xor_b32 v4, 4, v4\nv_lshl_add_u32 v{hX+1}, v4, 4, v5\nv_add_u32 v{hX+1}, 16384, v{hX+1}")
    g(f"v_add_u32 v{hX+2}, 1024, v{hX}\nv_add_u32 v{hX+3}, 1024, v{hX+1}")
    g(f"s_lshl_b32 s{sT0}, s{sJ}, 4")
    g(f"v_and_b32 v4, 1, v3\nv_lshlrev_b32 v4, 1, v4\nv_xor_b32 v4, v4, v2\nv_xor_b32 v6, 4, v4")
    g(f"v_add_u32 v5, s{sT0}, v1\nv_add_u32 v7, 8, v5")
    g(f"v_mul_u32_u24 v8, 3584, v5\nv_mul_u32_u24 v9, 3584, v7")
    g(f"v_lshl_add_u32 v{hG}, v4, 4, v8\nv_lshl_add_u32 v{hG+1}, v6, 4, v9")
    g(f"s_lshl_b32 s{sX0}, s{sRB}, 17")
    if typ == "A":
        g(f"v_mul_u32_u24 v8, 3072, v5\nv_mul_u32_u24 v9, 3072, v7")
        g(f"v_lshl_add_u32 v{hQ}, v4, 4, v8\nv_lshl_add_u32 v{hQ+1}, v6, 4, v9")
        g(f"s_lshl_b32 s{sQ0}, s{sCS}, 7\ns_mov_b32 s{sG0}, s{sQ0}")
        g(f"s_lshl_b32 s{sT0}, s{sJ}, 2\nv_and_b32 v10, 3, v1\nv_add_u32 v10, s{sT0}, v10")
        g("v_and_b32 v11, 7, v10\nv_lshrrev_b32 v12, 3, v10\nv_lshl_add_u32 v11, v11, 1, v12\nv_lshlrev_b32 v11, 10, v11")
        g(f"v_lshrrev_b32 v12, 1, v10\nv_xor_b32 v12, v12, v2\nv_lshl_add_u32 v{hXH}, v12, 4, v11")
        g(f"s_cmp_eq_u32 s{sRB}, 0\ns_cselect_b32 s{sM0}, 0, 16384")
    else:
        for cc, row, dst in ((4, 8, hM), (6, 9, hM+1)):
            g(f"v_lshrrev_b32 v10, 2, v{cc}\nv_and_b32 v11, 1, v{cc}\nv_lshl_add_u32 v10, v10, 1, v11\nv_lshl_add_u32 v{dst}, v10, 4, v{row}")
        g(f"v_and_b32 v10, 2, v4\nv_cmp_eq_u32 s[{sMASK}:{sMASK+1}], 0, v10")
        g(f"s_and_b32 s{sT0}, s{sCS}, 7\ns_mul_i32 s{sT0}, s{sT0}, 320\ns_add_u32 s{sT0}, s{sT0}, 1024")
        g(f"s_and_b32 s{sT1}, s{sCS}, 1\ns_lshl_b32 s{sT2}, s{sT1}, 6\ns_add_u32 s{sG0}, s{sT0}, s{sT2}")
        g(f"s_xor_b32 s{sT1}, s{sT1}, 1\ns_lshl_b32 s{sT1}, s{sT1}, 8\ns_add_u32 s{sM0}, s{sT0}, s{sT1}")


def h_slabbase(g, typ, s):
    g(f"s_add_u32 s{sT0}, s{sROT}, {s}\ns_and_b32 s{sT0}, s{sT0}, 7")
    g(f"s_lshl_b32 s{sXB}, s{sT0}, 7\ns_add_u32 s{sXB}, s{sXB}, s{sX0}")
    g(f"s_mul_i32 s{sT1}, s{sT0}, {64*3584}\ns_add_u32 s{sGB}, s{sT1}, s{sG0}")
    if typ == "A":
        g(f"s_mul_i32 s{sQB}, s{sT0}, {64*3072}\ns_add_u32 s{sQB}, s{sQB}, s{sQ0}\ns_sub_u32 s{sMB}, s{sXB}, s{sM0}")
    else:
        g(f"s_add_u32 s{sMB}, s{sT1}, s{sM0}")


def h_items(typ, s, grp):
    par = s & 1
    tag = f"G{grp}({s})"
    items = []
    def add(fn): items.append((tag, fn))
    def plain(vo, sr, so, mb, mc, off=0, pre=None, ex=None):
        def f(g, q):
            if pre: pre(g)
            if ex: g(ex)
            if off: dma(g, q, tag, vo, srd(sr), sSO, mb, mc, f"s_add_u32 s{sSO}, s{so}, {off}")
            else: dma(g, q, tag, vo, srd(sr), so, mb, mc)
            if ex: g("s_mov_b64 exec, -1")
        add(f)
    def panel(p):
        base = poff(par, p)
        if typ == "B" and p == 4:
            for b in range(2):
                plain(hM+b, SG, sMB, sJ2K, base + b*1024, ex=f"s_mov_b64 exec, s[{sMASK}:{sMASK+1}]")
                plain(hM+b, SU, sMB, sJ2K, base + b*1024, ex=f"s_not_b64 exec, s[{sMASK}:{sMASK+1}]")
            return
        if typ == "A": vo, sr, so, off = [(hQ, SQ, sQB, 1024), (hQ, SQ, sQB, 2048), (hQ, SQ, sQB, 0), (hG, SG, sGB, 0), (hG, SU, sGB, 0)][p]
        else: vo, sr, so, off = [(hG, SG, sGB, 0), (hG, SU, sGB, 0), (hG, SG, sGB, 128), (hG, SU, sGB, 128)][p]
        for b in range(2): plain(vo+b, sr, so, sJ2K, base + b*1024, off)
    if grp == 1:
        first = [True]
        order = ["P0", "x", "P1"] if False else ["x", "P0", "P1"]
        for b in range(4):
            plain(hX+b, SX, sXB, sJ4K, XR[par] + b*1024, pre=(lambda g: h_slabbase(g, typ, s)) if b == 0 else None)
        panel(0)
        if typ == "A": plain(hXH, SX, sMB, sJH, HALO[par], ex="s_mov_b32 exec_hi, 0")
        panel(1)
    else:
        for p in (2, 3, 4): panel(p)
    return items


class Fifo:
    def __init__(self, typ):
        self.it = []
        for s in range(8):
            for grp in (1, 2):
                earliest = -9 if s < 2 else 2*(s-2) + (grp-1)
                for tag, fn in h_items(typ, s, grp): self.it.append((earliest, tag, fn))
    def emit(self, g, q, seg, n, must=None):
        k = 0
        while self.it and self.it[0][0] <= seg and (k < n or any(t == must for _, t, _ in self.it)):
            self.it.pop(0)[2](g, q); k += 1
        return k


def h_w2dma(g, q, tag, i, m0base, m0const, delta=0, blocks=range(4)):
    for b in blocks:
        g(f"s_add_u32 m0, s{m0base}, {m0const + b*1024}")
        g(f"s_add_u32 s{sSO}, s{sKB+i}, {(b*8192 + delta) & 0xffffffff}")
        g(f"buffer_load_dwordx4 v{hW2}, {w2srd(i)}, s{sSO} offen lds")
        q.op(tag)


def h_setup2(g, typ):
    g(f"v_mov_b32 v{hLANE}, v0")
    g("v_lshrrev_b32 v1, 3, v0\nv_and_b32 v2, 7, v0\nv_bfe_u32 v3, v1, 1, 2\nv_lshlrev_b32 v3, 1, v3\nv_xor_b32 v3, v3, v2")
    g(f"v_lshlrev_b32 v1, 10, v1\nv_lshl_add_u32 v{hW2}, v3, 4, v1")
    w2_pattern(g, hA2, hLANE, sSTG, 1)
    kappa_offsets(g)
    g("v_lshrrev_b32 v4, 4, v0\nv_bfe_u32 v5, v0, 2, 2\nv_and_b32 v6, 3, v0")
    g("v_lshl_add_u32 v7, v4, 3, v5\nv_lshlrev_b32 v7, 7, v7\nv_lshl_add_u32 v7, v6, 3, v7")
    g("v_lshrrev_b32 v8, 1, v5\nv_and_b32 v9, 1, v4\nv_lshl_add_u32 v8, v9, 1, v8")
    cols_panel(g, sT0)
    g(f"s_lshl_b32 s{sT0}, s{sT0}, 13")
    g(f"v_xor_b32 v9, s{sJ}, v8\nv_lshl_add_u32 v{hHW}, v9, 5, v7\nv_add_u32 v{hCA}, s{sT0}, v{hHW}")
    g(f"s_cmp_eq_u32 s{sCLS}, 3\ns_cselect_b32 s{sT0}, 1, 6\ns_lshl_b32 s{sT0}, s{sT0}, 13\nv_add_u32 v{hCA+1}, s{sT0}, v{hCA}")
    if typ == "A":
        g(f"v_add_u32 v{hHW+1}, {WR[1]}, v{hHW}")
        g("v_and_b32 v5, 15, v0\nv_lshrrev_b32 v6, 1, v5\nv_xor_b32 v6, v6, v4")
        g(f"v_lshlrev_b32 v7, 7, v5\nv_add_u32 v7, {HALO[0]}, v7")
        g(f"v_lshl_add_u32 v{hHX}, v6, 4, v7\nv_xor_b32 v6, 4, v6\nv_lshl_add_u32 v{hHX+1}, v6, 4, v7")
        for r in range(8): g(f"v_mov_b32 v{r}, 0")
    g(f"s_and_b32 s{sT0}, s{sROT}, 1\ns_lshl_b32 s{sT0}, s{sT0}, 13\ns_lshr_b32 s{sT1}, s{sCS}, 3\ns_lshl_b32 s{sT1}, s{sT1}, 12")
    g(f"s_add_u32 s{sT0}, s{sT0}, s{sT1}\ns_add_u32 s{sT0}, s{sT0}, {XR[0]}")
    g(f"s_lshl_b32 s{sT1}, s{sJ}, 10\ns_add_u32 s{sT0}, s{sT0}, s{sT1}\nv_lshl_add_u32 v{hSA}, v{hLANE}, 4, s{sT0}")
    for r in range(234, 246): g(f"v_mov_b32 v{r}, 0")
    for r in range(250, 254): g(f"v_mov_b32 v{r}, 0x3f803f80")


def h_halo_reads(g, par):
    for pn in range(2):
        for j in range(2):
            for h in range(2):
                g(f"ds_read_b64_tr_b16 {v(8+pn*8+j*4+h*2,2)}, v{hHW+par} offset:{poff(par, pn) - WR[par] + j*4096 + h*512}")
    for j in range(2):
        g(f"ds_read_b128 {v(24+j*4,4)}, v{hHX+j} offset:{par*2048}")

def h_halo_mfma(g):
    for j in range(2): mfma(g, 0, 8+j*4, 24+j*4)
    for j in range(2): mfma(g, 4, 24+j*4, 16+j*4)


def h_colsum_rd(g, s, lab, cond):
    if cond == "w1":
        g(f"s_cmp_lg_u32 s{sCLS}, 0\ns_cbranch_scc1 {lab}")
    else:
        g(f"s_cmp_eq_u32 s{sCLS}, 0\ns_cbranch_scc1 {lab}")
    for n in range(2 if cond == "w1" else 1):
        for j in range(2):
            for h in range(2):
                g(f"ds_read_b64_tr_b16 {v(32+n*8+j*4+h*2,2)}, v{hCA + (s&1)} offset:{n*8192 + j*4096 + h*512}")
    g.lab(lab)


def h_colsum_mm(g, s, lab, cond):
    if cond == "w1":
        g(f"s_cmp_lg_u32 s{sCLS}, 0\ns_cbranch_scc1 {lab}")
    else:
        g(f"s_cmp_eq_u32 s{sCLS}, 0\ns_cbranch_scc1 {lab}")
    nn = 2 if cond == "w1" else 1
    g("s_waitcnt lgkmcnt(0)")
    for n in range(nn):
        for j in range(2): mfma(g, 234+n*4, 32+n*8+j*4, 250)
    if s == 1:
        cols_slot(g, sT2)
        g(f"s_lshl_b32 s{sT3}, s{sJ}, 6\ns_add_u32 s{sT2}, s{sT2}, s{sT3}")
        g(f"v_lshrrev_b32 v32, 4, v{hLANE}\nv_lshlrev_b32 v32, 4, v32")
        g("s_mov_b32 exec_lo, 0x00010001\ns_mov_b32 exec_hi, 0x00010001")
        for n in range(nn):
            g(f"buffer_store_dwordx4 {v(234+n*4,4)}, v32, {srd(SW)}, s{sT2} offen offset:{n*256} sc1")
        g("s_mov_b64 exec, -1")
    g.lab(lab)


def h_stats_rd(g, s):
    g(f"ds_read_b128 v[48:51], v{hSA} offset:{(s&1)*16384}")


def h_stats_mm(g, s):
    g("s_waitcnt lgkmcnt(0)")
    for d in range(4):
        g(f"v_lshlrev_b32 v52, 16, v{48+d}\nv_and_b32 v53, 0xffff0000, v{48+d}")
        g("v_pk_add_f32 v[242:243], v[242:243], v[52:53]\nv_pk_fma_f32 v[244:245], v[52:53], v[52:53], v[244:245]")
    if s == 1:
        g("v_add_f32 v242, v242, v243\nv_add_f32 v243, v244, v245")
        stats_slot(g, sT2)
        for ctl in ("quad_perm:[1,0,3,2]", "quad_perm:[2,3,0,1]", "row_half_mirror"):
            g(f"v_add_f32_dpp v242, v242, v242 {ctl} row_mask:0xf bank_mask:0xf")
            g(f"v_add_f32_dpp v243, v243, v243 {ctl} row_mask:0xf bank_mask:0xf")
            g("s_nop 0")
        g(f"s_lshl_b32 s{sT3}, s{sJ}, 6\ns_add_u32 s{sT2}, s{sT2}, s{sT3}")
        g(f"v_and_b32 v52, 0x38, v{hLANE}")
        g("s_mov_b32 exec_lo, 0x01010101\ns_mov_b32 exec_hi, 0x01010101")
        g(f"buffer_store_dwordx2 v[242:243], v52, {srd(SW)}, s{sT2} offen sc1")
        g("s_mov_b64 exec, -1")


def h_touch(g, q):
    g(f"s_lshl_b32 s{sT0}, s{sRB}, 4\ns_add_u32 s{sT0}, s{sT0}, s{sCS}\ns_lshl_b32 s{sT0}, s{sT0}, 2\ns_add_u32 s{sT0}, s{sT0}, s{sJ}")
    g(f"s_mul_i32 s{sT1}, s{sT0}, 1792\ns_lshl_b32 s{sT0}, s{sT0}, 9\nv_lshlrev_b32 v54, 7, v{hLANE}")
    g(f"s_mov_b64 exec, 0x3fff\nbuffer_load_dword v55, v54, {srd(SD)}, s{sT1} offen")
    g(f"s_mov_b64 exec, 15\nbuffer_load_dword v56, v54, {srd(SO)}, s{sT0} offen\ns_mov_b64 exec, -1")
    q.op("T"); q.op("T")


def spin(g, lab, sleep):
    if sleep: g(f"s_sleep {sleep}")
    g(f"s_add_u32 s{sLOOP}, s{sLOOP}, 1\ns_cmp_lt_u32 s{sLOOP}, 0x40000\ns_cbranch_scc1 {lab}")


def h_count_issue(g, typ):
    lab = f"L_h{typ}_ci"
    g(f"v_and_b32 v60, 1, v{hLANE}\nv_lshlrev_b32 v60, 7, v60")
    g(f"s_cmp_lg_u32 s{sJ}, 3\ns_cbranch_scc1 {lab}")
    g(f"buffer_load_dword v61, v60, {srd(SDBG)}, 0 offen sc1")
    g.lab(lab)


def h_count_check(g, typ, n_younger):
    lab = f"L_h{typ}_cnt"
    g(f"s_cmp_lg_u32 s{sJ}, 3\ns_cbranch_scc1 {lab}_done\ns_mov_b32 s{sLOOP}, 0")
    g(f"s_waitcnt vmcnt({n_younger})")
    g.lab(lab)
    g(f"v_cmp_gt_u32 vcc, 128, v61\ns_nop 3\ns_cmp_eq_u64 vcc, 0\ns_cbranch_scc1 {lab}_done")
    g(f"s_sleep 4\nbuffer_load_dword v61, v60, {srd(SDBG)}, 0 offen sc1\ns_waitcnt vmcnt(0)")
    spin(g, lab, 0)
    g.lab(lab + "_done")


def gather_loads(g, typ, who):
    if who == "cols":
        for j in range(4):
            g(f"buffer_load_dwordx4 {v(32+j*4,4)}, v58, {srd(SW)}, s{sHB} offen offset:{j*1280} sc1")
            g(f"buffer_load_dword v{48+j}, v59, {srd(SW)}, s{sHB} offen offset:{j*1280} sc1")
    else:
        for j in range(4):
            g(f"buffer_load_dwordx4 {v(32+j*4,4)}, v58, {srd(SW)}, s{sHB} offen offset:{j*1024} sc1")


def h_gather_issue(g, typ):
    P = f"L_h{typ}_gi"
    g(f"v_lshlrev_b32 v58, 4, v{hLANE}\nv_lshlrev_b32 v59, 2, v{hLANE}\nv_add_u32 v59, 1024, v59")
    g(f"s_cmp_eq_u32 s{sJ}, 0\ns_cbranch_scc1 {P}_done")
    g(f"s_cmp_eq_u32 s{sJ}, 3\ns_cbranch_scc1 {P}_c")
    g(f"s_sub_u32 s{sT0}, 2, s{sJ}\ns_sub_u32 s{sT0}, s{sRB}, s{sT0}\ns_max_i32 s{sT0}, s{sT0}, 0")
    g(f"s_lshl_b32 s{sHB}, s{sT0}, 12\ns_add_u32 s{sHB}, s{sHB}, {STATS}")
    gather_loads(g, typ, "stats")
    g(f"s_branch {P}_done")
    g.lab(P + "_c")
    g(f"s_lshl_b32 s{sHB}, s{sCS}, 13\ns_add_u32 s{sHB}, s{sHB}, {COLS}")
    gather_loads(g, typ, "cols")
    g.lab(P + "_done")


def h_gather_finish(g, typ, n_younger):
    P = f"L_h{typ}_gf"
    g(f"s_mov_b32 s{sLOOP}, 0")
    g(f"s_cmp_eq_u32 s{sJ}, 0\ns_cbranch_scc1 {P}_done")
    g(f"s_cmp_eq_u32 s{sJ}, 3\ns_cbranch_scc1 {P}_c")
    g(f"s_waitcnt vmcnt({n_younger})")
    g.lab(P + "_s")
    g("v_max3_u32 v52, v32, v33, v34")
    for k in range(35, 48, 2):
        if k < 47: g(f"v_max3_u32 v52, v52, v{k}, v{k+1}")
        else: g(f"v_max_u32 v52, v52, v{k}")
    g(f"v_cmp_eq_u32 vcc, -1, v52\ns_nop 3\ns_cmp_eq_u64 vcc, 0\ns_cbranch_scc1 {P}_sok")
    g("s_sleep 2")
    gather_loads(g, typ, "stats")
    g("s_waitcnt vmcnt(0)")
    spin(g, P + "_s", 0)
    g.lab(P + "_sok")
    for k in range(4):
        g(f"v_add_f32 v{32+k}, v{32+k}, v{36+k}\nv_add_f32 v{40+k}, v{40+k}, v{44+k}")
    for k in range(4): g(f"v_add_f32 v{32+k}, v{32+k}, v{40+k}")
    g("v_mul_f32 v36, 0x3b000000, v32\nv_mul_f32 v37, 0x3b000000, v34")
    g("v_mul_f32 v38, 0x3b000000, v33\nv_mul_f32 v39, 0x3b000000, v35")
    g("v_fma_f32 v38, -v36, v36, v38\nv_fma_f32 v39, -v37, v37, v39")
    g("v_max_f32 v38, 0, v38\nv_max_f32 v39, 0, v39")
    g("v_add_f32 v38, 0x3727c5ac, v38\nv_add_f32 v39, 0x3727c5ac, v39")
    g("v_rsq_f32 v38, v38\nv_rsq_f32 v39, v39")
    g(f"v_lshlrev_b32 v40, 3, v{hLANE}\nv_add_u32 v40, {MEAN}, v40")
    g(f"s_cmp_eq_u32 s{sJ}, 2\ns_cbranch_scc1 {P}_sw")
    g(f"v_and_b32 v40, 3, v{hLANE}\nv_bfe_u32 v41, v{hLANE}, 3, 1\nv_lshl_add_u32 v40, v41, 2, v40\nv_lshlrev_b32 v40, 3, v40\nv_add_u32 v40, {MEAN+512}, v40")
    g("s_mov_b32 exec_lo, 0\ns_mov_b32 exec_hi, 0xf0f00000")
    g.lab(P + "_sw")
    g(f"ds_write_b64 v40, v[36:37]\nds_write_b64 v40, v[38:39] offset:{RSTD-MEAN}")
    g(f"s_mov_b64 exec, -1\ns_branch {P}_done")
    g.lab(P + "_c")
    g(f"s_waitcnt vmcnt({n_younger})")
    g.lab(P + "_cc")
    g("v_max3_u32 v52, v32, v33, v34")
    for k in range(35, 51, 2): g(f"v_max3_u32 v52, v52, v{k}, v{k+1}")
    g("v_max_u32 v52, v52, v51")
    g(f"v_cmp_eq_u32 vcc, -1, v52\ns_nop 3\ns_cmp_eq_u64 vcc, 0\ns_cbranch_scc1 {P}_cok")
    g("s_sleep 2")
    gather_loads(g, typ, "cols")
    g("s_waitcnt vmcnt(0)")
    spin(g, P + "_cc", 0)
    g.lab(P + "_cok")
    for k in range(4):
        g(f"v_add_f32 v{32+k}, v{32+k}, v{36+k}\nv_add_f32 v{40+k}, v{40+k}, v{44+k}")
    g("v_add_f32 v48, v48, v49\nv_add_f32 v50, v50, v51")
    for k in range(4): g(f"v_add_f32 v{32+k}, v{32+k}, v{40+k}")
    g(f"v_add_f32 v48, v48, v50\nv_add_u32 v58, {CSUM}, v58\nv_add_u32 v59, {CSUM}, v59")
    g("ds_write_b128 v58, v[32:35]\nds_write_b32 v59, v48")
    g.lab(P + "_done")


def h_halo_finish(g):
    g(f"v_and_b32 v32, 15, v{hLANE}\nv_lshrrev_b32 v33, 4, v{hLANE}")
    g(f"s_lshl_b32 s{sT0}, s{sJ}, 6\ns_add_u32 s{sT0}, s{sT0}, {CSUM}")
    g(f"v_lshlrev_b32 v34, 2, v32\nv_lshlrev_b32 v35, 4, v33")
    g(f"v_add_u32 v36, {MEAN+512}, v34\nv_add_u32 v37, {MEAN+512}, v35\nv_add_u32 v38, s{sT0}, v35\nv_add_u32 v39, s{sT0}, v34")
    g(f"ds_read2_b32 v[40:41], v36 offset0:0 offset1:{(RSTD-MEAN)//4}")
    g(f"ds_read_b128 v[44:47], v38\nds_read_b32 v42, v39 offset:256")
    g(f"ds_read_b128 v[48:51], v37\nds_read_b128 v[52:55], v37 offset:{RSTD-MEAN}")
    g(f"s_lshl_b32 s{sT0}, s{sJ}, 10\ns_add_u32 s{sT0}, s{sT0}, {EX}")
    g(f"v_and_b32 v56, 7, v32\nv_lshl_add_u32 v56, v33, 3, v56\nv_lshlrev_b32 v56, 3, v56\nv_lshrrev_b32 v57, 3, v32\nv_lshl_add_u32 v56, v57, 9, v56\nv_add_u32 v56, s{sT0}, v56")
    g(f"v_and_b32 v57, 1, v33\nv_lshl_add_u32 v57, v57, 4, v32\nv_lshlrev_b32 v57, 3, v57\nv_lshrrev_b32 v58, 1, v33\nv_lshl_add_u32 v57, v58, 9, v57\nv_add_u32 v57, s{sT0}, v57")
    g("s_waitcnt lgkmcnt(0)")
    pkfma_negb(g, 0, 44, 40); pkfma_negb(g, 2, 46, 40)
    pkfma_negb(g, 4, 48, 42); pkfma_negb(g, 6, 50, 42)
    pkmul_b(g, 0, 40, 1); pkmul_b(g, 2, 40, 1)
    pkmul(g, 4, 52); pkmul(g, 6, 54)
    cvt(g, 0, 0); cvt(g, 1, 2); cvt(g, 4, 4); cvt(g, 5, 6)
    g("ds_write_b64 v56, v[0:1]\nds_write_b64 v57, v[4:5] offset:256")


def h_start(g, typ):
    q = HQ(g)
    q.f = Fifo(typ)
    h_setup(g, typ)
    q.f.emit(g, q, -9, 0, "G1(0)" if g.o.get("g2late", 1) else "G2(0)")
    return q


SLOT = {"S0": STG, "S1": STG+16384, "R0": 0, "R1": XR[0], "R2": 16384, "R3": 49152, "R4": XR[1], "R5": 65536, "R6": 32768}
CSLOT = ["R0", "R1", "R2", "R3", "R4"]
PC = ["R0", "R1", "R2", "R3"]
PH = ["R6", "R5", "S0", "S1"]
SCHED_A = {
    12: [("H", 0, "S0"), ("H", 1, "S1"), ("C", 0, 0, 3)],
    13: [("C", 0, 3, 4), ("C", 1), ("C", 2, 0, 2)],
    14: [("C", 2, 2, 4), ("r", 0), ("r", 1), ("H", 2, "S0"), ("H", 3, "S1")],
    15: [("C", 3), ("C", 4), ("H", 4, "R6"), ("H", 5, "R5"), ("halo",), ("r", 2), ("r", 3), ("H", 6, "S0"), ("H", 7, "S1"),
         ("bar",), ("r", 4), ("H", 8, "R6"), ("r", 5), ("r", 6), ("r", 7), ("r", 8)],
}
SCHED_B = {
    3: [("H", 0, "S0", 0, 1)], 5: [("H", 0, "S0", 1, 2)], 7: [("H", 0, "S0", 2, 3)], 9: [("H", 0, "S0", 3, 4)],
    11: [("H", 1, "S1", 0, 1)],
    12: [("r", 0), ("H", 1, "S1", 1, 4), ("H", 2, "S0"), ("C", 0, 0, 3)],
    13: [("C", 0, 3, 4), ("C", 1), ("C", 2, 0, 2)],
    14: [("C", 2, 2, 4), ("r", 1), ("H", 3, "S1"), ("C", 3), ("C", 4, 0, 1)],
    15: [("C", 4, 1, 4), ("r", 2), ("H", 4, "S0"), ("r", 3), ("bar",), ("r", 4)],
}


def h_main(g, typ, q):
    o = g.o
    h_setup2(g, typ)
    sched = o.get("sched" + typ, SCHED_A if typ == "A" else SCHED_B)
    DB, DA = -20*32768, -8*32768
    qe, qo = o.get("quota" + typ, (11, 7))
    if o.get("g2late", 0) >= 2: g(f"s_waitcnt vmcnt({o['g2late']})")
    q.f.emit(g, q, -9, 0, "G2(0)")
    if o.get("pre1", 0): q.f.emit(g, q, -9, 0, "G1(1)")
    g.hstamp("pre")
    g(f"s_waitcnt vmcnt({q.younger(['G1(0)'])})")
    g.hstamp("w-2")
    g("s_barrier")
    g.hstamp(-2)
    gm = cm = None
    where = {}
    cseg, gseg = o.get("cseg", 7), o.get("gseg", 10)
    hp = o.get("hprio", 1)
    for seg in range(-1, 16):
        s = seg // 2
        after_b1 = (seg % 2 == 1)
        need = f"G2({s+1})" if after_b1 else f"G1({s+1})"
        g.c(f"--- H seg {seg}")
        if seg == cseg + 2: h_count_check(g, typ, q.since(cm))
        if seg == gseg + 2: h_gather_finish(g, typ, q.since(gm))
        if seg == cseg: h_count_issue(g, typ); cm = q.mark()
        if seg == gseg: h_gather_issue(g, typ); gm = q.mark()
        if after_b1:
            sn = s + 1
            if sn < 2:
                h_colsum_rd(g, sn, f"L_h{typ}_cr1_{sn}", "w1")
                h_stats_rd(g, sn)
            q.f.emit(g, q, seg, o.get("q-1", 3) if seg == -1 else qo, need)
            if typ == "A" and sn < 8: h_halo_reads(g, sn & 1)
            if sn < 2:
                h_colsum_mm(g, sn, f"L_h{typ}_cs1_{sn}", "w1")
                h_stats_mm(g, sn)
        else:
            if typ == "A":
                if not hp: g("s_setprio 1")
                h_halo_mfma(g)
                if not hp: g("s_setprio 0")
            if s < 2: h_colsum_rd(g, s, f"L_h{typ}_cr2_{s}", "w2")
            q.f.emit(g, q, seg, qe, need)
            if s < 2: h_colsum_mm(g, s, f"L_h{typ}_cs2_{s}", "w2")
        if seg == o.get("touch", 2): h_touch(g, q)
        if seg == 15:
            g("s_setprio 0")
            g(f"s_mov_b32 s{sT0}, {(0x10000 - STG) & 0xffffffff}")
            for n in range(4): g(f"v_add_u32 v{246+n}, s{sT0}, v{hA2+n}")
            g(f"s_mov_b32 s{sT0}, {(-STG) & 0xffffffff}")
            for n in range(4): g(f"v_add_u32 v{242+n}, s{sT0}, v{hA2+n}")
        pend = False
        for ev in sched.get(seg, []):
            if ev[0] == "r":
                i = ev[1]; sl = where[i]
                g(f"s_waitcnt vmcnt({q.younger([f'W2({i})'])})")
                if sl[0] == "S":
                    for l in w2_reads(i, hA2, SLOT[sl] - STG): g(l)
                else: w2_far(g, i, 242, 246, SLOT[sl])
                pend = True
            elif ev[0] == "halo": h_halo_finish(g); pend = True
            elif ev[0] == "bar":
                g(f"s_waitcnt vmcnt({q.younger(['CW'])}) lgkmcnt(0)"); pend = False
                g.hstamp("w15")
                g("s_barrier")
            else:
                if pend: g("s_waitcnt lgkmcnt(0)"); pend = False
                if ev[0] == "H":
                    where[ev[1]] = ev[2]
                    h_w2dma(g, q, f"W2({ev[1]})", ev[1], sJ4K, SLOT[ev[2]], 0, range(*ev[3:5]) if len(ev) > 3 else range(4))
                else:
                    h_w2dma(g, q, "CW", ev[1], sJ4K, SLOT[CSLOT[ev[1]]], DB, range(*ev[2:4]) if len(ev) > 2 else range(4))
        if seg == 15: break
        g.hstamp(f"i{seg}")
        if need in q.q: g(f"s_waitcnt vmcnt({q.younger([need])}) lgkmcnt(0)")
        else: g("s_waitcnt lgkmcnt(0)")
        g.hstamp(f"w{seg}")
        g("s_barrier")
        g.hstamp(seg)
    assert not q.f.it
    g.hstamp("i15")
    for k in range(4): g(f"s_add_u32 s{sPS+k}, s{sJ4K}, {SLOT[PH[k]]}")
    g(f"v_mov_b32 v253, v{hLANE}\nv_mov_b32 v252, v{hW2}\ns_mov_b32 s{sN6}, {1 if typ == 'A' else 0}")
    g("s_waitcnt lgkmcnt(0)")
    if typ == "B":
        g("s_barrier")
        if o.get("hp2", 1): g("s_setprio 1")
    g.hstamp("BW")
    g("s_branch L_P2")


def poll_issue(g, sa, dst):
    g(f"s_load_dwordx2 s[{dst}:{dst+1}], s[{sFL}:{sFL+1}], {sa} glc")


def poll_check(g, lab, sa, dst):
    g(f"s_mov_b32 s{sLOOP}, 0")
    g.lab(lab)
    g("s_waitcnt lgkmcnt(0)")
    g(f"s_and_b32 s{dst}, s{dst}, s{dst+1}\ns_cmp_eq_u32 s{dst}, 1\ns_cbranch_scc1 {lab}_ok")
    poll_issue(g, sa, dst)
    spin(g, lab, 0)
    g.lab(lab + "_ok")


def flag_addr(g):
    g(f"s_lshr_b32 s{sT0}, s{sRT}, 1\ns_lshl_b32 s{sT0}, s{sT0}, 4\ns_add_u32 s{sT0}, s{sT0}, s{sWAVE}\ns_lshl_b32 s{sT0}, s{sT0}, 7")
    g(f"s_and_b32 s{sT1}, s{sRT}, 1\ns_lshl_b32 s{sT1}, s{sT1}, 3\ns_add_u32 s{sT0}, s{sT0}, s{sT1}\ns_add_u32 s{sT0}, s{sT0}, {FLAGS}")
    g(f"s_add_u32 s{sFL}, s{SW}, s{sT0}\ns_addc_u32 s{sFL+1}, s{SW+1}, 0")


def phase2(g):
    g.lab("L_P2")
    g.stamp(4)
    poll_issue(g, 1024, sP0)
    g.c("A-part W2 blocks of this wave -> private slots (v252 = DMA lane offset)")
    g(f"s_cmp_eq_u32 s{sN6}, 1\ns_cbranch_scc1 L_p2_nodma")
    for k in range(4):
        for b in range(4):
            g(f"s_add_u32 m0, s{sPS+k}, {b*1024}")
            g(f"s_add_u32 s{sSO}, s{sKB+5+k}, {b*8192}")
            g(f"buffer_load_dwordx4 v252, {w2srd(5+k)}, s{sSO} offen lds")
    g(f"s_mov_b32 s{sT0}, 0")
    w2_pattern(g, 204, 253, sT0, 192)
    g.lab("L_p2_nodma")
    g(f"s_mul_i32 s{sHB}, s{sRT}, {72*KP}")
    for i in range(9):
        g(f"s_lshr_b32 s{sKB+i}, s{sKB+i}, 15\ns_mul_i32 s{sKB+i}, s{sKB+i}, {KP}\ns_add_u32 s{sKB+i}, s{sKB+i}, s{sHB}")
        if i >= 7: g(f"s_add_u32 s{sKB+i}, s{sKB+i}, {56*KP}")
    h_offsets(g, vHO, 253, HS)
    g("v_mov_b32 v252, v253")
    g("v_and_b32 v254, 15, v253\nv_lshrrev_b32 v255, 4, v253")
    g("v_lshlrev_b32 v254, 8, v254\nv_and_b32 v253, 7, v253\nv_xor_b32 v255, v255, v253")
    g("v_lshl_add_u32 v254, v255, 4, v254")
    poll_check(g, "L_pollB", 1024, sP0)
    g.stamp(5)
    order = []
    steps = []
    plan = [(grp, t) for grp in ((0, 1), (2, 3), (4,)) for t in range(4)]
    plan += [(grp, t) for th in (0, 2) for grp in ((5, 6), (7, 8)) for t in (th, th+1)]
    for grp, t in plan:
        steps.append((grp, t, len(order)))
        for i in grp: order.append((i, t))
    def wr(t):
        g(f"v_add_u32 v253, s{sPS+t}, v254\nv_xor_b32 v255, 64, v253")
        for nn in range(4):
            g(f"ds_write_b128 v{253 + 2*(nn & 1)}, {v((nn*4+t)*4,4)} offset:{(nn >> 1)*128}")
    def rdblk(k):
        out = [f"v_add_u32 v{200+n}, s{sPS+k}, v{204+n}" for n in range(4)]
        r = w2_reads(5+k, 200, 0)
        out += r if k < 3 else r[0:4] + r[6:8] + r[4:6]
        return out
    issued = 0
    acheck = g.o.get("acheck", 7)
    aok = False
    def issue():
        nonlocal issued
        i, t = order[issued]
        g(f"buffer_load_dwordx4 {v(HS+4*(issued % NHS),4)}, v{vHO+t}, {srd(SW)}, s{sKB+i} offen {g.o.get('hld', 'sc1')}")
        issued += 1
    for _ in range(NHS): issue()
    g("s_setprio 0")
    for si, (grp, t, n0) in enumerate(steps):
        last = n0 + len(grp) - 1
        g(f"s_waitcnt vmcnt({issued - 1 - last})")
        if si == 12: g("s_waitcnt lgkmcnt(0)")
        if si == acheck - g.o.get("alead", 2): poll_issue(g, 0, sP0)
        for nn in range(4):
            for k, i in enumerate(grp):
                d = (nn*4+t)*4
                a = W2F + (i*4+nn)*4
                b = HS + 4*((n0+k) % NHS)
                if i == 0: mfma0(g, d, a, b)
                else: mfma(g, d, a, b)
        if si == acheck:
            poll_check(g, "L_pollA", 0, sP0)
            g.stamp(6)
            aok = True
        while issued < (36 if aok else 20) and issued <= last + NHS: issue()
        if si < 4:
            g(f"s_cmp_eq_u32 s{sN6}, 1\ns_cbranch_scc1 L_p2_nord{si}")
            for l in rdblk(si): g(l)
            g.lab(f"L_p2_nord{si}")
        if grp == (5, 6) and t >= 2: wr(t-2)
    g.stamp(7)
    g(f"v_mov_b32 v64, v252\nv_and_b32 v66, 7, v64\nv_lshrrev_b32 v71, 3, v64")
    g(f"s_lshl_b32 s{sT1}, s{sWAVE}, 3\nv_add_u32 v72, s{sT1}, v71")
    g("v_and_b32 v75, 15, v72\nv_bfe_u32 v74, v72, 4, 1\nv_lshl_add_u32 v73, v75, 1, v74\nv_and_b32 v74, 32, v72\nv_add_u32 v73, v73, v74")
    g("v_lshlrev_b32 v73, 10, v73\nv_lshl_add_u32 v73, v66, 4, v73")
    g(f"s_lshl_b32 s{sT2}, s{sRT}, 16\ns_lshl_b32 s{sT3}, s{sCT}, 7\ns_add_u32 s{sT2}, s{sT2}, s{sT3}")
    g(f"buffer_load_dwordx4 v[76:79], v73, {srd(SX)}, s{sT2} offen")
    wr(2); wr(3)
    g(f"s_lshr_b32 s{sT0}, s{sWAVE}, 1")
    for dst, tab in ((sXB, PC), (sQB, PH)):
        g(f"s_mov_b32 s{dst}, {SLOT[tab[0]]}")
        for k in range(1, 4):
            g(f"s_cmp_eq_u32 s{sT0}, {k}\ns_cselect_b32 s{dst}, {SLOT[tab[k]]}, s{dst}")
    g("v_lshlrev_b32 v74, 1, v66\nv_xor_b32 v74, v74, v71")
    g("v_lshlrev_b32 v80, 8, v75\nv_lshl_add_u32 v80, v74, 4, v80")
    g(f"v_add_u32 v81, s{sXB}, v80\nv_add_u32 v83, s{sQB}, v80\nv_xor_b32 v82, 16, v81\nv_xor_b32 v84, 16, v83")
    g("s_waitcnt lgkmcnt(0)")
    g.hstamp("r1")
    g("s_barrier")
    g.hstamp("r2")
    for p in range(8):
        for e in range(2):
            g(f"ds_read_b128 {v(96+p*8+e*4,4)}, v{81 + e + 2*(p >> 2)} offset:{(p & 3)*4096}")
    g("s_waitcnt vmcnt(0)")
    for k in range(4):
        g(f"v_lshlrev_b32 v{160+2*k}, 16, v{76+k}\nv_and_b32 v{161+2*k}, 0xffff0000, v{76+k}")
    for p in range(8):
        g(f"s_waitcnt lgkmcnt({14-2*p})")
        for k in range(4):
            g(f"v_pk_add_f32 {v(160+2*k,2)}, {v(160+2*k,2)}, {v(96+p*8+2*k,2)}")
    for k in range(4): cvt(g, 168+k, 160+2*k)
    g(f"buffer_store_dwordx4 v[168:171], v73, {srd(SOUT)}, s{sT2} offen {g.o.get('outf', '')}")
    if g.stamps:
        g.stamp(8)
        sw = g.o.get("stampwave", 0)
        tins = "s_memtime" if g.o.get("cyc") else "s_memrealtime"
        g(f"s_waitcnt vmcnt(0)\n{tins} s[22:23]\ns_waitcnt lgkmcnt(0)\ns_cmp_lg_u32 s{sWAVE}, {sw}\ns_cbranch_scc1 L_end")
        if g.o.get("dbgst"):
            g("v_mov_b32 v1, 0\ns_mov_b64 exec, 1\ns_not_b32 s4, s4")
            for k in range(10):
                g(f"v_mov_b32 v2, s{4+2*k}\ns_nop 0\nbuffer_atomic_umax v2, v1, {srd(SDBG)}, 0 offen offset:{8+4*k} sc1\ns_waitcnt vmcnt(0)")
            g("s_endpgm")
        g(f"s_lshr_b32 s{sT0}, s{sCS}, 3\ns_lshl_b32 s{sT0}, s{sT0}, 7\ns_and_b32 s{sT1}, s{sCS}, 7\ns_lshl_b32 s{sT1}, s{sT1}, 4\ns_add_u32 s{sT0}, s{sT0}, s{sT1}\ns_add_u32 s{sT0}, s{sT0}, s{sRB}")
        g(f"s_lshl_b32 s{sT0}, s{sT0}, 8\ns_add_u32 s{sT0}, s{sT0}, {STAMP}\nv_mov_b32 v1, 0")
        for k in range(10):
            g(f"v_mov_b32 v2, s{4+2*k}\nv_mov_b32 v3, s{5+2*k}\nbuffer_store_dwordx2 v[2:3], v1, {srd(SW)}, s{sT0} offen offset:{8*k}\ns_nop 1")
    g.lab("L_end")
    g("s_endpgm")


HEAD = """; Kernarg layout for this problem (80 bytes, ptrs only, base s[0:1]):
; @launch grid=(256,1,1) block=(512,1,1) lds=163840
.amdgcn_target "amdgcn-amd-amdhsa--gfx950"
.text
.globl {k}
.p2align 8
.type {k},@function
{k}:
"""
TAIL = """.section .rodata,"a"
.p2align 6
.amdhsa_kernel {k}
  .amdhsa_next_free_vgpr 256
  .amdhsa_next_free_sgpr 102
  .amdhsa_accum_offset 256
  .amdhsa_group_segment_fixed_size 0
  .amdhsa_kernarg_size 80
  .amdhsa_user_sgpr_count 2
  .amdhsa_user_sgpr_kernarg_segment_ptr 1
  .amdhsa_system_sgpr_workgroup_id_x 1
  .amdhsa_float_denorm_mode_32 3
.end_amdhsa_kernel
"""


def build(stamps=False, opts=None):
    g = G(stamps, opts)
    prologue(g)
    g(f"s_cmp_lt_u32 s{sCS}, 8\ns_cbranch_scc1 L_HA")
    qb = h_start(g, "B")
    g("s_branch L_HB")
    g.lab("L_HA")
    qa = h_start(g, "A")
    h_main(g, "A", qa)
    g.lab("L_HB")
    h_main(g, "B", qb)
    g.lab("L_C")
    c_setup(g)
    g(f"s_cmp_ge_u32 s{sCS}, 8\ns_cbranch_scc1 L_CB")
    c_kloop(g, "A")
    c_epi_A(g)
    g("s_branch L_CW")
    g.lab("L_CB")
    c_kloop(g, "B")
    c_epi_B(g)
    g.lab("L_CW")
    c_flag(g)
    phase2(g)
    pad = "    .fill 7680, 4, 0xBF800000\n"
    return HEAD.format(k=KNAME) + g.text() + pad + TAIL.format(k=KNAME)


if __name__ == "__main__":
    ap = argparse.ArgumentParser()
    ap.add_argument("-o", default="parallel_sum__sliding_local_dilated__glu_gated_reglu__prompt.s")
    ap.add_argument("--stamps", action="store_true")
    ap.add_argument("--opt", action="append", default=[])
    a = ap.parse_args()
    opts = {}
    for kv in a.opt:
        k_, val = kv.split("=", 1)
        opts[k_] = eval(val)
    txt = build(a.stamps, opts)
    open(a.o, "w").write(txt)
    import hazard
    for e in hazard.check(txt): print("HAZARD", e)
    import subprocess
    r = subprocess.run(["clang", "-x", "assembler", "-target", "amdgcn-amd-amdhsa", "-mcpu=gfx950", "-c", a.o, "-o", "_chk.o"], capture_output=True, text=True)
    if r.returncode: print(r.stderr)
```
